```python
import torch

def _softmax(x, axis=-1):
    return torch.softmax(x, dim=axis)
def _gelu(x):
    return torch.nn.functional.gelu(x, approximate="tanh")
def _silu(x):
    return torch.nn.functional.silu(x)
def _sigmoid(x):
    return torch.sigmoid(x)
def _layernorm(x, axis=-1, eps=1e-5):
    m = x.mean(dim=axis, keepdim=True)
    v = x.var(dim=axis, keepdim=True, unbiased=False)
    return (x - m) / torch.sqrt(v + eps)
def _scatter_add(tgt, idx, src, axis=0):
    return tgt.clone().index_add_(axis, idx, src)
def _segment_sum(src, seg, n):
    out = torch.zeros((n,) + src.shape[1:], dtype=src.dtype)
    return out.index_add_(0, seg, src)
def _pad(x, pw):
    flat = tuple(v for pair in reversed(pw) for v in pair)
    return torch.nn.functional.pad(x, flat)

kernel_name = 'standalone__paged_block_table_kv_radixattention__decode'

def setup_inputs():

    _w = (lambda a: (lambda t: t.to(torch.bfloat16) if t.is_floating_point() else t)(torch.as_tensor(a)))
    B, H, Hkv, Dh = 1, 16, 8, 256
    Lk = 8192
    bs = 16
    nb = max(2, Lk // bs)
    P = max(1, nb // 2)
    n_phys = P + B * (nb - P)
    shared = torch.arange(P, dtype=torch.int64)
    priv = P + torch.arange(B * (nb - P), dtype=torch.int64).reshape(B, nb - P)
    bt = torch.cat([torch.tile(shared[None, :], (B, 1)), priv], dim=1)
    ctx = nb * bs - (torch.arange(1, B + 1, dtype=torch.int64) * 2654435761) % max(1, (nb * bs - P * bs) // 2)
    return {
        "q": _w((lambda *s: torch.randn(*s, dtype=torch.bfloat16) * 0.8)(B, H, Dh)),
        "k_cache": _w((lambda *s: torch.randn(*s, dtype=torch.bfloat16) * 0.8)(n_phys, bs, Hkv, Dh)),
        "v_cache": _w((lambda *s: torch.randn(*s, dtype=torch.bfloat16) * 0.05)(n_phys, bs, Hkv, Dh)),
        "block_table": _w(bt.to(torch.int64)),
        "ctx_lens": _w(torch.as_tensor(ctx).to(torch.int64)),
    }

def reference(q, k_cache, v_cache, block_table, ctx_lens):
    B, H, Dh = q.shape
    n_phys, bs, Hkv, _ = k_cache.shape
    nb = block_table.shape[1]
    Lk = nb * bs
    rep = H // Hkv
    k = k_cache[block_table].reshape(B, Lk, Hkv, Dh)
    v = v_cache[block_table].reshape(B, Lk, Hkv, Dh)
    k = (lambda x, n, axis: torch.repeat_interleave(x, n, dim=axis))(k, rep, axis=2)
    v = (lambda x, n, axis: torch.repeat_interleave(x, n, dim=axis))(v, rep, axis=2)
    scores = torch.einsum("bhd,bkhd->bhk", q, k) * (Dh ** -0.5)
    pos = torch.arange(Lk)
    valid = pos[None, :] < ctx_lens[:, None]
    scores = torch.where(valid[:, None, :], scores, -1e9)
    p = _softmax(scores, axis=-1)
    return torch.einsum("bhk,bkhd->bhd", p, v)
```

```python
import argparse

NAME = "standalone__paged_block_table_kv_radixattention__decode"

HEADER = """; Kernarg layout for this problem (64 bytes, ptrs only, base s[0:1]):
"""

KV_BYTES = 0x2000000
SCALE = 0x3DB8AA3B
NEG = 0xFF000000
REC_OFF = 0x80000
TS_OFF = 0x100000
DPP = " row_mask:0xf bank_mask:0xf"


class Opt:
    W = 4
    F = 6
    R = 16
    kvflags = "nt"
    ts = ""
    rnd = 1
    lds = 83968
    hmap = "mix"
    pollflags = "sc1"
    pubflags = "sc1"
    pollsleep = 0
    recsleep = 32
    swz = 1
    nopoll = 0
    dry = 1
    first = 3
    flagsleep = 48


def gen(o):
    W, F, R = o.W, o.F, o.R
    NG = 64 // W
    NL = 4 * NG
    ts = o.ts
    L = []
    e = L.append

    def stamp(k):
        if ts:
            e(f"    s_memrealtime s[{70 + 2 * k}:{71 + 2 * k}]")

    vLANE, vOFF, vREM, vMAX = 0, 1, 2, 3
    vMASK = 4
    vACC0, vACC1 = 8, 12
    vQ = 16
    vA = 32
    vY = 40
    vNEG = 42
    vOADDR = 43
    t = 44
    vX = 52
    vR = (vX + NG + 3) // 4 * 4
    nfv = max(vR + 4 * R, 64 + 8 * W)
    accum = (nfv + 3) // 4 * 4
    sW, sS, sH, sCTX, sC = 3, 28, 29, 30, 31
    sBT = 32
    sA, sB, sD, sE = 64, 65, 66, 67

    LDS_REC, LDS_O = 0, 256
    RECW = 4 * W
    assert o.lds >= LDS_O + 2048 * W
    kn = NAME + "_kernel"
    e(f"; @launch grid=(256,1,1) block=({64 * (W + 1)},1,1) lds={o.lds}")
    e('.amdgcn_target "amdgcn-amd-amdhsa--gfx950"')
    e(".text")
    e(f".globl {kn}")
    e(".p2align 8")
    e(f".type {kn},@function")
    e(f"{kn}:")
    e("    s_load_dwordx16 s[4:19], s[0:1], 0")
    if ts:
        for k in range(1, 13):
            e(f"    s_mov_b32 s{70 + 2 * k}, 0")
    stamp(0)
    e("    s_cmp_ge_u32 s2, 256")
    e("    s_cbranch_scc1 L_done")
    e(f"    v_lshrrev_b32 v{t}, 6, v0")
    e(f"    v_and_b32 v{vLANE}, 63, v0")
    e(f"    v_readfirstlane_b32 s{sW}, v{t}")
    e(f"    s_lshr_b32 s{sS}, s2, 3")
    if o.hmap == "mix":
        e(f"    s_add_u32 s{sH}, s2, s{sS}")
        e(f"    s_and_b32 s{sH}, s{sH}, 7")
    else:
        e(f"    s_and_b32 s{sH}, s2, 7")
    e(f"    s_cmp_eq_u32 s{sW}, {W}")
    e("    s_cbranch_scc1 L_svc")

    tok_off = [i * 128 * W for i in range(NG)]
    e(f"    s_lshl_b32 s{sA}, s{sW}, 5")
    e(f"    s_add_u32 s{sB}, s{sA}, s{sS}")
    e(f"    s_and_b32 s{sA}, s{sB}, 0xfc")
    e(f"    s_lshl_b32 s{sB}, s{sB}, 2")
    e(f"    v_and_b32 v{t}, 15, v{vLANE}")
    e(f"    v_lshrrev_b32 v{t+1}, 4, v{vLANE}")
    e(f"    v_lshlrev_b32 v{t+2}, 4, v{t}")
    e(f"    v_lshl_add_u32 v{vOFF}, v{t+1}, 12, v{t+2}")
    e(f"    s_lshl_b32 s{sD}, s{sH}, 9")
    e(f"    s_and_b32 s{sE}, s{sS}, 3")
    e(f"    s_lshl_b32 s{sE}, s{sE}, 14")
    e(f"    s_add_u32 s{sE}, s{sE}, s{sD}")
    e(f"    v_add_u32 v{vOFF}, s{sE}, v{vOFF}")
    e(f"    v_lshrrev_b32 v{t+3}, 3, v{t}")
    e(f"    v_lshl_add_u32 v{t+3}, v{t+3}, 9, v{t+2}")
    e(f"    s_lshl_b32 s{sD}, s{sH}, 10")
    e(f"    v_add_u32 v{t+3}, s{sD}, v{t+3}")
    e(f"    v_xor_b32 v{t+4}, 0x200, v{t+3}")
    e(f"    v_add_u32 v{vREM}, s{sB}, v{t+1}")
    e(f"    s_mov_b32 s22, {KV_BYTES:#x}")
    e("    s_mov_b32 s23, 0x20000")
    e(f"    s_mov_b32 s26, {KV_BYTES:#x}")
    e("    s_mov_b32 s27, 0x20000")
    e("    s_waitcnt lgkmcnt(0)")
    nfirst = min(NG, max(o.first, (F + 1) // 2))
    e(f"    s_load_dword s{sCTX}, s[12:13], 0")
    for j in range(nfirst):
        e(f"    s_load_dword s{sBT + j}, s[10:11], s{sA} offset:{j * 32 * W}")
    stamp(1)
    e(f"    global_load_dwordx4 v[{vQ}:{vQ+3}], v{t+3}, s[4:5]")
    e(f"    global_load_dwordx4 v[{vQ+8}:{vQ+11}], v{t+4}, s[4:5]")
    e(f"    global_load_dwordx4 v[{vQ+4}:{vQ+7}], v{t+3}, s[4:5] offset:256")
    e(f"    global_load_dwordx4 v[{vQ+12}:{vQ+15}], v{t+4}, s[4:5] offset:256")
    e("    s_mov_b32 s20, s6")
    e("    s_mov_b32 s21, s7")
    e("    s_mov_b32 s24, s8")
    e("    s_mov_b32 s25, s9")
    e("    s_waitcnt lgkmcnt(0)")
    e(f"    s_cmp_gt_i32 s{sCTX}, 0")
    e(f"    s_cselect_b32 s{sCTX}, s{sCTX}, 0x2000")
    e(f"    s_cselect_b32 s{sC}, {SCALE:#x}, 0")
    e(f"    s_sub_i32 s{sB}, s{sCTX}, s{sB}")
    fl = (" " + o.kvflags) if o.kvflags else ""

    def soff(i):
        e(f"    s_lshl_b32 s{sBT + i}, s{sBT + i}, 16")
        e(f"    s_cmp_gt_i32 s{sB}, {tok_off[i]}")
        e(f"    s_cselect_b32 s{sBT + i}, s{sBT + i}, s22")

    def slot(n):
        return vR + 4 * (n % R)

    def issue(n):
        isv = n >= 2 * NG
        i, hf = (n % (2 * NG)) >> 1, n & 1
        srd = "s[24:27]" if isv else "s[20:23]"
        b = slot(n)
        e(f"    buffer_load_dwordx4 v[{b}:{b+3}], v{vOFF}, {srd}, s{sBT + i} offen offset:{256 * hf}{fl}")

    for n in range(F):
        if n % 2 == 0:
            soff(n // 2)
        issue(n)
    stamp(2)
    for j in range(nfirst, NG):
        e(f"    s_load_dword s{sBT + j}, s[10:11], s{sA} offset:{j * 32 * W}")
    for j in range((F + 1) // 2, nfirst):
        soff(j)
    e(f"    v_sub_u32 v{vREM}, s{sCTX}, v{vREM}")
    for i in range(NG):
        e(f"    v_mov_b32 v{vX + i}, 0")
    e(f"    v_mov_b32 v{vY}, 0")
    e(f"    v_mov_b32 v{vY + 1}, 0")
    e(f"    v_mov_b32 v{vNEG}, {NEG:#x}")
    e(f"    v_mov_b32 v{vMAX}, {NEG:#x}")
    e(f"    v_and_b32 v{t+5}, 1, v{vLANE}")
    e(f"    v_lshlrev_b32 v{t+5}, 4, v{t+5}")
    e(f"    v_mov_b32 v{t+6}, 0xffff")
    e(f"    v_lshlrev_b32 v{t+5}, v{t+5}, v{t+6}")
    e(f"    v_bfe_u32 v{t+6}, v{vLANE}, 1, 2")
    for r in range(4):
        e(f"    v_cmp_eq_u32 vcc, {r}, v{t+6}")
        e("    s_nop 1")
        e(f"    v_cndmask_b32 v{vMASK + r}, 0, v{t+5}, vcc")
    e(f"    s_lshl_b32 s{sD}, s{sW}, 11")
    e(f"    v_lshl_add_u32 v{vOADDR}, v{vLANE}, 4, s{sD}")
    e("    s_barrier")
    e("    s_waitcnt lgkmcnt(0)")
    for j in range(nfirst, NG):
        soff(j)

    def finish_group(i):
        y = vY + (i & 1)
        x = vX + i
        ops = [
            f"v_add_f32_dpp v{x}, v{y}, v{x} row_ror:8{DPP}",
            f"v_cmp_lt_i32 vcc, {tok_off[i]}, v{vREM}",
            f"v_mov_b32 v{y}, 0",
            f"v_add_f32_dpp v{x}, v{x}, v{x} quad_perm:[1,0,3,2]{DPP}",
            "s_nop 1",
            f"v_add_f32_dpp v{x}, v{x}, v{x} quad_perm:[2,3,0,1]{DPP}",
            "s_nop 1",
            f"v_add_f32_dpp v{x}, v{x}, v{x} row_half_mirror{DPP}",
        ]
        if o.rnd:
            ops += [f"v_cvt_pk_bf16_f32 v{x}, v{x}, v{x}", f"v_and_b32 v{x}, 0xffff0000, v{x}"]
        ops += [
            f"v_mul_f32 v{x}, s{sC}, v{x}",
            f"v_cndmask_b32 v{x}, v{vNEG}, v{x}, vcc",
            f"v_max_f32 v{vMAX}, v{vMAX}, v{x}",
        ]
        for op in ops:
            e("    " + op)

    def xred(op, a, b):
        for sw in ("v_permlane16_swap_b32", "v_permlane32_swap_b32"):
            e(f"    v_mov_b32 v{b}, v{a}")
            e("    s_nop 1")
            e(f"    {sw} v{b}, v{a}")
            e(f"    {op} v{a}, v{a}, v{b}")

    def afrag(i):
        a = vA + 4 * (i & 1)
        e(f"    v_cvt_pk_bf16_f32 v{t}, v{vX + i}, v{vX + i}")
        for r in range(4):
            e(f"    v_and_b32 v{a + r}, v{t}, v{vMASK + r}")

    issued = [F]

    def step(c):
        e(f"    s_waitcnt vmcnt({issued[0] - 1 - c})")
        while issued[0] < min(NL, c + 1 + F):
            issue(issued[0])
            issued[0] += 1

    for c in range(2 * NG):
        i, hf = c >> 1, c & 1
        step(c)
        if c == 0:
            stamp(3)
        b = slot(c)
        for r in range(4):
            e(f"    v_dot2c_f32_bf16 v{vX + i}, v{b + r}, v{vQ + 4 * hf + r}")
            e(f"    v_dot2c_f32_bf16 v{vY + (i & 1)}, v{b + r}, v{vQ + 8 + 4 * hf + r}")
        if hf == 0 and i > 0:
            finish_group(i - 1)
    stamp(4)
    e("    s_nop 2")
    finish_group(NG - 1)
    xred("v_max_f32", vMAX, t)
    c0 = 2 * NG
    step(c0)
    for i in range(NG):
        e(f"    v_sub_f32 v{vX + i}, v{vX + i}, v{vMAX}")
    for i in range(NG):
        e(f"    v_exp_f32 v{vX + i}, v{vX + i}")
    e(f"    v_bfe_u32 v{t+2}, v{vLANE}, 3, 1")
    e(f"    v_add_f32 v{t+1}, v{vX}, v{vX + 1}")
    for i in range(2, NG):
        e(f"    v_add_f32 v{t+1}, v{t+1}, v{vX + i}")
    e(f"    s_lshl_b32 s{sD}, s{sW}, 2")
    e(f"    v_mul_u32_u24 v{t+2}, {2 * RECW}, v{t+2}")
    e(f"    v_add_u32 v{t+2}, s{sD}, v{t+2}")
    xred("v_add_f32", t + 1, t)
    e("    s_mov_b64 exec, 0x101")
    e(f"    ds_write2_b32 v{t+2}, v{vMAX}, v{t+1} offset0:{LDS_REC // 4} offset1:{LDS_REC // 4 + W}")
    e("    s_mov_b64 exec, -1")
    afrag(0)
    stamp(5)
    for c in range(c0, NL):
        i, hf = (c - c0) >> 1, c & 1
        if c > c0:
            step(c)
        else:
            e("    s_nop 1")
        acc = vACC0 if hf == 0 else vACC1
        a = vA + 4 * (i & 1)
        b = slot(c)
        cc = "0" if i == 0 else f"v[{acc}:{acc+3}]"
        e(f"    v_mfma_f32_16x16x32_bf16 v[{acc}:{acc+3}], v[{a}:{a+3}], v[{b}:{b+3}], {cc}")
        if hf == 0 and i + 1 < NG:
            afrag(i + 1)
        if c == NL - 2:
            e("    s_nop 7")
            e(f"    ds_write_b128 v{vOADDR}, v[{vACC0}:{vACC0+3}] offset:{LDS_O}")
    stamp(6)
    e("    s_nop 7")
    e(f"    ds_write_b128 v{vOADDR}, v[{vACC1}:{vACC1+3}] offset:{LDS_O + 1024}")
    e("    s_waitcnt lgkmcnt(0)")
    e("    s_barrier")
    if ts:
        e("    s_branch L_fin")
    else:
        e("    s_endpgm")

    u = 1
    vPUB0, vPUB1, vRECP, vRECG, vCNT, vMB, vOUT, vLO, vLR = 16, 17, 18, 19, 20, 21, 22, 23, 24
    vF = 28
    vM = vF + W
    vD = 64
    assert vM + 2 * W <= vD
    pub = (" " + o.pubflags) if o.pubflags else ""
    pol = (" " + o.pollflags) if o.pollflags else ""
    e("L_svc:")
    e(f"    v_lshlrev_b32 v{u}, 2, v{vLANE}")
    e(f"    v_mov_b32 v{u+1}, -1")
    e(f"    ds_write_b32 v{u}, v{u+1} offset:{LDS_REC}")
    e(f"    v_lshrrev_b32 v{u+2}, 2, v{vLANE}")
    e(f"    v_and_b32 v{u+3}, 3, v{vLANE}")
    e(f"    s_lshl_b32 s{sA}, s{sH}, 16")
    e(f"    v_lshl_add_u32 v{u+4}, v{u+3}, 4, s{sA}")
    e(f"    v_lshl_add_u32 v{u+4}, v{u+2}, 11, v{u+4}")
    if o.swz:
        e(f"    v_lshlrev_b32 v{u+5}, 1, v{u+2}")
        e(f"    v_xor_b32 v{u+5}, s{sS}, v{u+5}")
    else:
        e(f"    v_mov_b32 v{u+5}, s{sS}")
    e(f"    v_lshl_add_u32 v{vPUB0}, v{u+5}, 6, v{u+4}")
    e(f"    v_add_u32 v{vPUB1}, 0x8000, v{vPUB0}")
    e(f"    s_lshl_b32 s{sB}, s{sH}, 9")
    e(f"    s_add_u32 s{sB}, s{sB}, {REC_OFF:#x}")
    e(f"    v_lshl_add_u32 v{vRECG}, v{vLANE}, 3, s{sB}")
    e(f"    s_lshl_b32 s{sD}, s{sS}, 3")
    e(f"    v_add_u32 v{vRECP}, s{sD}, v{vRECG}")
    e(f"    s_lshl_b32 s{sD}, s{sH}, 5")
    e(f"    v_mov_b32 v{vCNT}, s{sD}")
    e(f"    s_lshl_b32 s{sD}, s{sS}, 11")
    e(f"    s_add_u32 s{sD}, s{sD}, s{sA}")
    e(f"    v_lshl_add_u32 v{vMB}, v{vLANE}, 4, s{sD}")
    e(f"    s_lshl_b32 s{sA}, s{sH}, 10")
    e(f"    s_and_b32 s{sB}, s{sS}, 8")
    e(f"    s_lshl_b32 s{sB}, s{sB}, 6")
    e(f"    s_add_u32 s{sA}, s{sA}, s{sB}")
    e(f"    s_and_b32 s{sB}, s{sS}, 16")
    e(f"    s_lshl_b32 s{sB}, s{sB}, 4")
    e(f"    s_add_u32 s{sA}, s{sA}, s{sB}")
    e(f"    s_and_b32 s{sB}, s{sS}, 3")
    e(f"    s_lshl_b32 s{sB}, s{sB}, 6")
    e(f"    s_add_u32 s{sA}, s{sA}, s{sB}")
    e(f"    s_and_b32 s{sB}, s{sS}, 4")
    e(f"    s_lshl_b32 s{sB}, s{sB}, 1")
    e(f"    s_add_u32 s{sA}, s{sA}, s{sB}")
    e(f"    v_lshl_add_u32 v{vOUT}, v{u+3}, 4, s{sA}")
    e(f"    v_bfe_u32 v{u+5}, v{vLANE}, 4, 1")
    e(f"    v_lshl_add_u32 v{vOUT}, v{u+5}, 2, v{vOUT}")
    e(f"    v_lshrrev_b32 v{u+5}, 5, v{vLANE}")
    e(f"    v_lshl_add_u32 v{vOUT}, v{u+5}, 1, v{vOUT}")
    e(f"    v_mul_u32_u24 v{vLR}, {2 * RECW}, v{u+5}")
    e(f"    v_lshlrev_b32 v{vLO}, 4, v{vLANE}")
    e(f"    v_mov_b32 v{u+7}, -1")
    e(f"    v_mov_b32 v{u+8}, -1")
    e("    s_mov_b32 s40, 1")
    e("    s_mov_b32 s41, 1")
    e("    s_mov_b32 s42, 0x000f000f")
    e("    s_mov_b32 s43, 0x000f000f")
    e("    s_waitcnt lgkmcnt(0)")
    stamp(1)
    e(f"    s_cmp_lg_u32 s{sS}, 0")
    e("    s_cbranch_scc1 L_nolead0")
    e(f"    global_store_dwordx2 v{vRECG}, v[{u+7}:{u+8}], s[18:19]{pub}")
    e("L_nolead0:")
    if o.dry:
        for w in range(W):
            e(f"    v_mov_b32 v{vF + w}, 0")
        e("    s_mov_b32 s44, -1")
        e("    s_branch L_tail")
        e("L_back:")
        e("    s_mov_b32 s44, 0")
    else:
        for r in range(4):
            e(f"    v_mov_b32 v{vD + r}, -1")
        e(f"    global_store_dwordx4 v{vPUB0}, v[{vD}:{vD+3}], s[18:19]{pub}")
        e(f"    global_store_dwordx4 v{vPUB1}, v[{vD}:{vD+3}], s[18:19]{pub}")
        e("    s_barrier")
    e(f"    v_mov_b32 v{u}, 1")
    e("    s_waitcnt vmcnt(0)")
    stamp(2)
    e(f"    s_cmp_lg_u32 s{sS}, 0")
    e("    s_cbranch_scc1 L_nolead1")
    e("    s_mov_b64 exec, 1")
    e(f"    global_store_dword v{vCNT}, v{u}, s[16:17] sc1")
    e("    s_mov_b64 exec, -1")
    e("L_nolead1:")
    e(f"    s_mov_b32 s{sB}, 0x40000")
    e("L_w2:")
    e(f"    s_sleep {o.flagsleep}")
    e(f"    global_load_dword v{u+4}, v{vCNT}, s[16:17] sc1")
    e(f"    s_sub_u32 s{sB}, s{sB}, 1")
    e("    s_cbranch_scc1 L_w2x")
    e("    s_waitcnt vmcnt(0)")
    e(f"    v_cmp_eq_u32 vcc, 0, v{u+4}")
    e("    s_cbranch_vccnz L_w2")
    e("L_w2x:")
    stamp(9)
    e(f"    s_mov_b32 s{sB}, 0x40000")
    e("L_w1:")
    e("    s_sleep 4")
    for j in range(W // 2):
        e(f"    ds_read_b128 v[{vM + 4 * j}:{vM + 4 * j + 3}], v{vLR} offset:{LDS_REC + 16 * j}")
    e(f"    s_sub_u32 s{sB}, s{sB}, 1")
    e("    s_cbranch_scc1 L_w1x")
    e("    s_waitcnt lgkmcnt(0)")
    e(f"    v_max_u32 v{u}, v{vM}, v{vM + 1}")
    for j in range(2, 2 * W, 2):
        e(f"    v_max3_u32 v{u}, v{u}, v{vM + j}, v{vM + j + 1}")
    e(f"    v_cmp_eq_u32 vcc, -1, v{u}")
    e("    s_cbranch_vccnz L_w1")
    e("L_w1x:")
    e("    s_waitcnt lgkmcnt(0)")
    stamp(3)
    e(f"    v_max_f32 v{u+1}, v{vM}, v{vM + 1}")
    for j in range(2, W, 2):
        e(f"    v_max3_f32 v{u+1}, v{u+1}, v{vM + j}, v{vM + j + 1}")
    for w in range(W):
        e(f"    v_sub_f32 v{vF + w}, v{vM + w}, v{u+1}")
    for w in range(W):
        e(f"    v_exp_f32 v{vF + w}, v{vF + w}")
    e("    s_nop 0")
    e(f"    v_mul_f32 v{u+2}, v{vF}, v{vM + W}")
    for w in range(1, W):
        e(f"    v_fmac_f32 v{u+2}, v{vF + w}, v{vM + W + w}")
    e("    s_mov_b64 exec, s[40:41]")
    e(f"    global_store_dwordx2 v{vRECP}, v[{u+1}:{u+2}], s[18:19]{pub}")
    e("    s_mov_b64 exec, -1")
    stamp(4)
    e(f"    s_mov_b32 s{sB}, 0x40000")
    e("L_w3:")
    if o.recsleep:
        e(f"    s_sleep {o.recsleep}")
    e(f"    global_load_dwordx2 v[{u+1}:{u+2}], v{vRECG}, s[18:19] sc1")
    e(f"    s_sub_u32 s{sB}, s{sB}, 1")
    e("    s_cbranch_scc1 L_w3x")
    e("    s_waitcnt vmcnt(0)")
    e(f"    v_max_u32 v{u}, v{u+1}, v{u+2}")
    e(f"    v_cmp_eq_u32 vcc, -1, v{u}")
    e("    s_cbranch_vccnz L_w3")
    e("L_w3x:")
    e("    s_waitcnt vmcnt(0)")
    stamp(5)

    def half_red(op, a, b):
        for ror in (1, 2, 4, 8):
            e("    s_nop 1")
            e(f"    {op}_dpp v{a}, v{a}, v{a} row_ror:{ror}{DPP}")
        e(f"    v_mov_b32 v{b}, v{a}")
        e("    s_nop 1")
        e(f"    v_permlane16_swap_b32 v{b}, v{a}")
        e(f"    {op} v{a}, v{a}, v{b}")

    e(f"    v_mov_b32 v{u+3}, v{u+1}")
    half_red("v_max_f32", u + 3, u + 4)
    e(f"    v_sub_f32 v{u+1}, v{u+1}, v{u+3}")
    e(f"    v_exp_f32 v{u+1}, v{u+1}")
    for w in range(W):
        e(f"    v_sub_f32 v{vF + w}, v{vM + w}, v{u+3}")
    e(f"    v_mul_f32 v{u+2}, v{u+1}, v{u+2}")
    half_red("v_add_f32", u + 2, u + 4)
    e(f"    v_rcp_f32 v{u+2}, v{u+2}")
    for w in range(W):
        e(f"    v_exp_f32 v{vF + w}, v{vF + w}")
    e("    s_nop 0")
    for w in range(W):
        e(f"    v_mul_f32 v{vF + w}, v{vF + w}, v{u+2}")
    stamp(6)
    if ts:
        e("    s_waitcnt lgkmcnt(0)")
    e("L_tail:")
    e("    s_barrier")
    for hf in range(2):
        for w in range(W):
            d = vD + 4 * (hf * W + w)
            e(f"    ds_read_b128 v[{d}:{d+3}], v{vLO} offset:{LDS_O + 2048 * w + 1024 * hf}")
    for hf in range(2):
        d0 = vD + 4 * hf * W
        for w in range(W):
            e(f"    s_waitcnt lgkmcnt({min(15, 2 * W - 1 - (hf * W + w))})")
            d = d0 + 4 * w
            for r in range(4):
                if w == 0:
                    e(f"    v_mul_f32 v{d0 + r}, v{vF}, v{d + r}")
                else:
                    e(f"    v_fmac_f32 v{d0 + r}, v{vF + w}, v{d + r}")
        if o.dry:
            for r in range(4):
                e(f"    v_or_b32 v{d0 + r}, s44, v{d0 + r}")
        e(f"    global_store_dwordx4 v{vPUB0 + hf}, v[{d0}:{d0+3}], s[18:19]{pub}")
    stamp(7)
    P = 4
    if o.dry:
        e(f"    s_andn2_b32 s{sB}, 0x40000, s44")
        e("    s_cbranch_scc0 L_pollskip")
    else:
        e(f"    s_mov_b32 s{sB}, 0x40000")
    if o.nopoll:
        e(f"    s_mov_b32 s{sB}, 0")
    e("L_poll:")
    if o.pollsleep:
        e(f"    s_sleep {o.pollsleep}")
    e(f"    global_load_dwordx4 v[{P}:{P+3}], v{vMB}, s[18:19]{pol}")
    e(f"    global_load_dwordx4 v[{P+4}:{P+7}], v{vMB}, s[18:19] offset:1024{pol}")
    e("L_pollskip:")
    e(f"    s_sub_u32 s{sB}, s{sB}, 1")
    e("    s_waitcnt vmcnt(1)")
    e(f"    v_max3_u32 v1, v{P}, v{P+1}, v{P+2}")
    e("    s_waitcnt vmcnt(0)")
    e(f"    v_max3_u32 v2, v{P+3}, v{P+4}, v{P+5}")
    e(f"    v_max3_u32 v1, v1, v{P+6}, v{P+7}")
    e("    v_max_u32 v1, v1, v2")
    e("    v_cmp_eq_u32 vcc, -1, v1")
    e("    s_cbranch_scc1 L_pollx")
    e("    s_cbranch_vccnz L_poll")
    e("L_pollx:")
    stamp(8)
    for r in range(4):
        e(f"    v_add_f32 v{P + r}, v{P + r}, v{P + 4 + r}")
    e(f"    v_permlane32_swap_b32 v{P}, v{P+1}")
    e(f"    v_add_f32 v{P}, v{P}, v{P+1}")
    e(f"    v_permlane32_swap_b32 v{P+2}, v{P+3}")
    e(f"    v_add_f32 v{P+2}, v{P+2}, v{P+3}")
    e("    s_nop 1")
    e(f"    v_permlane16_swap_b32 v{P}, v{P+2}")
    e(f"    v_add_f32 v{P}, v{P}, v{P+2}")
    e("    s_nop 1")
    e(f"    v_add_f32_dpp v{P}, v{P}, v{P} row_ror:4{DPP}")
    e("    s_nop 1")
    e(f"    v_add_f32_dpp v{P}, v{P}, v{P} row_ror:8{DPP}")
    e(f"    v_cvt_pk_bf16_f32 v{P}, v{P}, v{P}")
    if o.dry:
        e("    s_cmp_lg_u32 s44, 0")
        e("    s_cbranch_scc1 L_back")
    e("    s_mov_b64 exec, s[42:43]")
    e(f"    global_store_short v{vOUT}, v{P}, s[14:15]")
    e("L_fin:")
    if ts:
        e("    s_mov_b64 exec, -1")
        e("    s_waitcnt vmcnt(0)")
        stamp(12)
        e("    s_getreg_b32 s96, hwreg(HW_REG_XCC_ID)")
        e("    s_getreg_b32 s97, hwreg(HW_REG_HW_ID)")
        e("    s_waitcnt lgkmcnt(0)")
        e(f"    s_lshl_b32 s{sA}, s2, 4")
        e(f"    s_add_u32 s{sA}, s{sA}, s{sW}")
        e(f"    s_lshl_b32 s{sA}, s{sA}, 6")
        e(f"    s_add_u32 s{sA}, s{sA}, {TS_OFF:#x}")
        e(f"    v_mov_b32 v1, s{sA}")
        for k in range(13):
            e(f"    v_mov_b32 v{16 + k}, s{70 + 2 * k}")
        e("    v_mov_b32 v29, s96")
        e("    v_mov_b32 v30, s97")
        e(f"    v_mov_b32 v31, s{sB}")
        e("    s_mov_b64 exec, 1")
        for k in range(4):
            e(f"    global_store_dwordx4 v1, v[{16 + 4 * k}:{16 + 4 * k + 3}], s[18:19] offset:{16 * k}")
        if ts.startswith("enc"):
            k, mul, add = [int(x) for x in ts.split(":")[1:]]
            e(f"    s_cmp_lg_u32 s{sW}, {W}")
            e("    s_cbranch_scc1 L_done")
            e(f"    s_sub_u32 s{sA}, s{70 + 2 * k}, s70")
            e(f"    s_mul_i32 s{sA}, s{sA}, {mul}")
            e(f"    s_add_u32 s{sA}, s{sA}, {add}")
            e(f"    s_min_u32 s{sA}, s{sA}, 100000")
            e("L_enc:")
            e("    s_memrealtime s[98:99]")
            e("    s_waitcnt lgkmcnt(0)")
            e(f"    s_sub_u32 s{sB}, s98, s70")
            e(f"    s_cmp_lt_u32 s{sB}, s{sA}")
            e("    s_cbranch_scc1 L_enc")
    e("L_done:")
    e("    s_endpgm")

    e('.section .rodata,"a"')
    e(".p2align 6")
    e(f".amdhsa_kernel {kn}")
    e(f"  .amdhsa_next_free_vgpr {nfv}")
    e("  .amdhsa_next_free_sgpr 102")
    e(f"  .amdhsa_accum_offset {accum}")
    e("  .amdhsa_group_segment_fixed_size 0")
    e("  .amdhsa_kernarg_size 64")
    e("  .amdhsa_user_sgpr_count 2")
    e("  .amdhsa_user_sgpr_kernarg_segment_ptr 1")
    e("  .amdhsa_system_sgpr_workgroup_id_x 1")
    e("  .amdhsa_float_denorm_mode_32 3")
    e(".end_amdhsa_kernel")
    return HEADER + "\n".join(L) + "\n"


if __name__ == "__main__":
    ap = argparse.ArgumentParser()
    ap.add_argument("out")
    ap.add_argument("opts", nargs="*")
    a = ap.parse_args()
    o = Opt()
    for kv in a.opts:
        k, v = kv.split("=", 1)
        cur = getattr(Opt, k)
        setattr(o, k, type(cur)(v.replace("+", " ")) if isinstance(cur, str) else int(v))
    open(a.out, "w").write(gen(o))
```

```python
import argparse

NAME = "standalone__paged_block_table_kv_radixattention__decode"

HEADER = """; Kernarg layout for this problem (64 bytes, ptrs only, base s[0:1]):
"""

KV_BYTES = 0x2000000
SCALE = 0x3DB8AA3B
NEG = 0xFF000000
REC_OFF = 0x80000
TS_OFF = 0x100000
DPP = " row_mask:0xf bank_mask:0xf"
SPIN = 0x40000


class Opt:
    W = 4
    F = 6
    Fend = 0
    cend = 64
    R = 16
    kvflags = "nt"
    ts = ""
    tsmask = 0x1fff
    lds = 83968
    hmap = "xcd"
    local = 1
    swz = 1
    cflag = 12
    clate = 50
    outflags = ""
    nopoll = 0
    nosvc = 0
    prio = 0


def gen(o):
    W, F, R = o.W, o.F, o.R
    NG = 64 // W
    NL = 4 * NG
    ts = o.ts
    L = []
    e = L.append

    def stamp(k):
        if ts and (o.tsmask >> k) & 1:
            e(f"    s_memrealtime s[{70 + 2 * k}:{71 + 2 * k}]")

    vLANE, vOFF, vREM, vMAX = 0, 1, 2, 3
    vMASK = 4
    vACC0, vACC1 = 8, 12
    vQ = 16
    vA = 32
    vY = 40
    vNEG, vOADDR, vBT, vADDR, vPROG = 42, 43, 44, 45, 46
    t = 48
    vX = 56
    vR = (vX + NG + 3) // 4 * 4
    nfv = max(vR + 4 * R, 64 + 8 * W)
    accum = (nfv + 3) // 4 * 4
    sW, sS, sH, sCTX, sC = 3, 28, 29, 30, 31
    sA, sB, sD, sE, sT, sX = 64, 65, 66, 67, 68, 69

    LDS_REC, LDS_PROG, LDS_O = 0, 192, 256
    RECW = 4 * W
    assert o.lds >= LDS_O + 2048 * W and 4 * RECW <= LDS_PROG
    kn = NAME + "_kernel"
    e(f"; @launch grid=(256,1,1) block=({64 * (W + 1)},1,1) lds={o.lds}")
    e('.amdgcn_target "amdgcn-amd-amdhsa--gfx950"')
    e(".text")
    e(f".globl {kn}")
    e(".p2align 8")
    e(f".type {kn},@function")
    e(f"{kn}:")
    e("    s_load_dwordx16 s[4:19], s[0:1], 0")
    stamp(0)
    e(f"    s_lshr_b32 s{sS}, s2, 3")
    e(f"    s_cmp_ge_u32 s{sS}, 32")
    e("    s_cbranch_scc1 L_done")
    e(f"    v_lshrrev_b32 v{t}, 6, v0")
    e(f"    v_and_b32 v{vLANE}, 63, v0")
    e(f"    v_readfirstlane_b32 s{sW}, v{t}")
    e(f"    v_lshlrev_b32 v{t+1}, 2, v{vLANE}")
    e(f"    v_mov_b32 v{t+2}, -1")
    e(f"    ds_write_b32 v{t+1}, v{t+2}")
    if o.hmap == "mix":
        e(f"    s_add_u32 s{sH}, s2, s{sS}")
        e(f"    s_and_b32 s{sH}, s{sH}, 7")
    else:
        e(f"    s_and_b32 s{sH}, s2, 7")
    e(f"    s_cmp_eq_u32 s{sW}, {W}")
    e("    s_cbranch_scc0 L_data")
    e("    s_waitcnt lgkmcnt(0)")
    e("    s_barrier")
    e("    s_branch L_svc")

    lgW = W.bit_length() - 1
    tok_off = [i * 128 * W for i in range(NG)]
    e("L_data:")
    e(f"    s_lshl_b32 s{sA}, s{sW}, 5")
    e(f"    s_add_u32 s{sB}, s{sA}, s{sS}")
    e(f"    s_andn2_b32 s{sA}, s{sB}, 3")
    e(f"    v_and_b32 v{t}, {NG - 1}, v{vLANE}")
    e(f"    v_lshl_add_u32 v{vBT}, v{t}, {5 + lgW}, s{sA}")
    e(f"    v_lshrrev_b32 v{t+1}, 4, v{vLANE}")
    e(f"    v_lshl_add_u32 v{vREM}, s{sB}, 2, v{t+1}")
    e(f"    v_lshl_add_u32 v{t+5}, v{t}, {7 + lgW}, v{vREM}")
    e(f"    v_and_b32 v{t}, 15, v{vLANE}")
    e(f"    v_lshlrev_b32 v{t+2}, 4, v{t}")
    e(f"    v_lshrrev_b32 v{t+3}, 3, v{t}")
    e(f"    v_lshl_add_u32 v{t+3}, s{sH}, 1, v{t+3}")
    e(f"    v_lshl_add_u32 v{t+3}, v{t+3}, 9, v{t+2}")
    e("    s_waitcnt lgkmcnt(0)")
    e(f"    global_load_dword v{vBT}, v{vBT}, s[10:11]")
    e(f"    s_load_dword s{sCTX}, s[12:13], 0")
    stamp(1)
    e(f"    v_xor_b32 v{t+4}, 0x200, v{t+3}")
    e(f"    global_load_dwordx4 v[{vQ}:{vQ+3}], v{t+3}, s[4:5]")
    e(f"    global_load_dwordx4 v[{vQ+8}:{vQ+11}], v{t+4}, s[4:5]")
    e(f"    global_load_dwordx4 v[{vQ+4}:{vQ+7}], v{t+3}, s[4:5] offset:256")
    e(f"    global_load_dwordx4 v[{vQ+12}:{vQ+15}], v{t+4}, s[4:5] offset:256")
    e("    s_barrier")
    e(f"    s_and_b32 s{sE}, s{sS}, 3")
    e(f"    s_lshl_b32 s{sE}, s{sE}, 5")
    e(f"    s_add_u32 s{sE}, s{sE}, s{sH}")
    e(f"    s_lshl_b32 s{sE}, s{sE}, 9")
    e(f"    v_lshl_add_u32 v{vOFF}, v{t+1}, 12, v{t+2}")
    e(f"    v_add_u32 v{vOFF}, s{sE}, v{vOFF}")
    e("    s_mov_b64 s[20:21], s[6:7]")
    e(f"    s_mov_b32 s22, {KV_BYTES:#x}")
    e("    s_mov_b32 s23, 0x20000")
    e(f"    v_mov_b32 v{t+6}, s22")
    e("    s_waitcnt lgkmcnt(0)")
    e(f"    s_cmp_gt_i32 s{sCTX}, 0")
    e(f"    s_cselect_b32 s{sCTX}, s{sCTX}, 0x2000")
    e(f"    s_cselect_b32 s{sC}, {SCALE:#x}, 0")
    e(f"    v_cmp_gt_i32 vcc, s{sCTX}, v{t+5}")
    e("    s_waitcnt vmcnt(4)")
    e(f"    v_lshlrev_b32 v{vBT}, 16, v{vBT}")
    e(f"    v_cndmask_b32 v{vBT}, v{t+6}, v{vBT}, vcc")
    e("    s_nop 1")
    fl = (" " + o.kvflags) if o.kvflags else ""

    def slot(n):
        return vR + 4 * (n % R)

    def issue(n):
        isv = n >= 2 * NG
        i, hf = (n % (2 * NG)) >> 1, n & 1
        srd = "s[24:27]" if isv else "s[20:23]"
        b = slot(n)
        if hf == 0:
            e(f"    v_add_u32_dpp v{vADDR}, v{vBT}, v{vOFF} row_newbcast:{i}{DPP}")
        e(f"    buffer_load_dwordx4 v[{b}:{b+3}], v{vADDR}, {srd}, 0 offen offset:{256 * hf}{fl}")

    for n in range(F):
        issue(n)
    stamp(2)
    if ts:
        for k in list(range(1, 13)):
            if not ((o.tsmask >> k) & 1) or k in (8,) and False:
                e(f"    s_mov_b32 s{70 + 2 * k}, 0")
    e("    s_mov_b64 s[24:25], s[8:9]")
    e("    s_mov_b32 s26, s22")
    e("    s_mov_b32 s27, 0x20000")
    e(f"    v_sub_u32 v{vREM}, s{sCTX}, v{vREM}")
    for i in range(NG):
        e(f"    v_mov_b32 v{vX + i}, 0")
    e(f"    v_mov_b32 v{vY}, 0")
    e(f"    v_mov_b32 v{vY + 1}, 0")
    e(f"    v_mov_b32 v{vNEG}, {NEG:#x}")
    e(f"    v_mov_b32 v{vMAX}, v{vNEG}")

    def late_consts():
        e(f"    v_and_b32 v{t+5}, 1, v{vLANE}")
        e(f"    v_lshlrev_b32 v{t+5}, 4, v{t+5}")
        e(f"    v_mov_b32 v{t+6}, 0xffff")
        e(f"    v_lshlrev_b32 v{t+5}, v{t+5}, v{t+6}")
        e(f"    v_bfe_u32 v{t+6}, v{vLANE}, 1, 2")
        for r in range(4):
            e(f"    v_cmp_eq_u32 vcc, {r}, v{t+6}")
            e("    s_nop 1")
            e(f"    v_cndmask_b32 v{vMASK + r}, 0, v{t+5}, vcc")
        e(f"    s_lshl_b32 s{sD}, s{sW}, 11")
        e(f"    v_lshl_add_u32 v{vOADDR}, v{vLANE}, 4, s{sD}")
        e(f"    s_lshl_b32 s{sD}, s{sW}, 2")
        e(f"    v_mov_b32 v{vPROG}, s{sD}")

    def progress(val):
        e(f"    v_mov_b32 v{t+7}, {val}")
        e("    s_mov_b64 exec, 1")
        e(f"    ds_write_b32 v{vPROG}, v{t+7} offset:{LDS_PROG}")
        e("    s_mov_b64 exec, -1")

    def finish_group(i):
        y = vY + (i & 1)
        x = vX + i
        for op in (
            f"v_add_f32_dpp v{x}, v{y}, v{x} row_ror:8{DPP}",
            f"v_cmp_lt_i32 vcc, {tok_off[i]}, v{vREM}",
            f"v_mov_b32 v{y}, 0",
            f"v_add_f32_dpp v{x}, v{x}, v{x} quad_perm:[1,0,3,2]{DPP}",
            "s_nop 1",
            f"v_add_f32_dpp v{x}, v{x}, v{x} quad_perm:[2,3,0,1]{DPP}",
            "s_nop 1",
            f"v_add_f32_dpp v{x}, v{x}, v{x} row_half_mirror{DPP}",
            f"v_cvt_pk_bf16_f32 v{x}, 0, v{x}",
            f"v_cndmask_b32 v{x}, v{vNEG}, v{x}, vcc",
            f"v_max_f32 v{vMAX}, v{vMAX}, v{x}",
        ):
            e("    " + op)

    def xred(op, a, b):
        for sw in ("v_permlane16_swap_b32", "v_permlane32_swap_b32"):
            e(f"    v_mov_b32 v{b}, v{a}")
            e("    s_nop 1")
            e(f"    {sw} v{b}, v{a}")
            e(f"    {op} v{a}, v{a}, v{b}")

    def afrag(i):
        a = vA + 4 * (i & 1)
        e(f"    v_cvt_pk_bf16_f32 v{t}, v{vX + i}, v{vX + i}")
        for r in range(4):
            e(f"    v_and_b32 v{a + r}, v{t}, v{vMASK + r}")

    issued = [F]
    cflag, clate, cend = o.cflag * NL // 64, o.clate * NL // 64, o.cend * NL // 64

    def step(c):
        e(f"    s_waitcnt vmcnt({issued[0] - 1 - c})")
        win = o.Fend if (o.Fend and c >= cend) else F
        while issued[0] < min(NL, c + 1 + win):
            issue(issued[0])
            issued[0] += 1
        if c == cflag:
            progress(1)
        if c == clate:
            progress(2)

    for c in range(2 * NG):
        i, hf = c >> 1, c & 1
        step(c)
        if c == 0:
            stamp(3)
        if c in (NG // 2, NG, 3 * NG // 2):
            stamp(7 + (c - 1) // (NG // 2))
        b = slot(c)
        for r in range(4):
            e(f"    v_dot2c_f32_bf16 v{vX + i}, v{b + r}, v{vQ + 4 * hf + r}")
            e(f"    v_dot2c_f32_bf16 v{vY + (i & 1)}, v{b + r}, v{vQ + 8 + 4 * hf + r}")
        if hf == 0 and i > 0:
            finish_group(i - 1)
        if c == 1:
            late_consts()
    stamp(4)
    e("    s_nop 2")
    finish_group(NG - 1)
    xred("v_max_f32", vMAX, t)
    c0 = 2 * NG
    step(c0)
    for i in range(NG):
        e(f"    v_sub_f32 v{vX + i}, v{vX + i}, v{vMAX}")
    for i in range(NG):
        e(f"    v_mul_f32 v{vX + i}, s{sC}, v{vX + i}")
    for i in range(NG):
        e(f"    v_exp_f32 v{vX + i}, v{vX + i}")
    step(c0 + 1)
    e(f"    v_bfe_u32 v{t+2}, v{vLANE}, 3, 1")
    e(f"    v_add_f32 v{t+1}, v{vX}, v{vX + 1}")
    for i in range(2, NG):
        e(f"    v_add_f32 v{t+1}, v{t+1}, v{vX + i}")
    e(f"    v_mad_u32_u24 v{t+2}, v{t+2}, {2 * RECW}, v{vPROG}")
    xred("v_add_f32", t + 1, t)
    e("    s_mov_b64 exec, 0x101")
    e(f"    ds_write2_b32 v{t+2}, v{vMAX}, v{t+1} offset0:{LDS_REC // 4} offset1:{LDS_REC // 4 + W}")
    e("    s_mov_b64 exec, -1")
    afrag(0)
    stamp(5)
    for c in range(c0, NL):
        i, hf = (c - c0) >> 1, c & 1
        if c > c0 + 1:
            step(c)
        elif c == c0:
            e("    s_nop 1")
        if c in (c0 + 2 * NG // 3, c0 + 4 * NG // 3):
            stamp(10 if c == c0 + 2 * NG // 3 else 11)
        acc = vACC0 if hf == 0 else vACC1
        a = vA + 4 * (i & 1)
        b = slot(c)
        cc = "0" if i == 0 else f"v[{acc}:{acc+3}]"
        e(f"    v_mfma_f32_16x16x32_bf16 v[{acc}:{acc+3}], v[{a}:{a+3}], v[{b}:{b+3}], {cc}")
        if hf == 0 and i + 1 < NG:
            afrag(i + 1)
    stamp(6)
    e("    s_nop 5")
    e(f"    ds_write_b128 v{vOADDR}, v[{vACC0}:{vACC0+3}] offset:{LDS_O}")
    e("    s_nop 0")
    e(f"    ds_write_b128 v{vOADDR}, v[{vACC1}:{vACC1+3}] offset:{LDS_O + 1024}")
    e("    s_waitcnt lgkmcnt(0)")
    e("    s_barrier")
    if ts:
        e("    s_branch L_fin")
    else:
        e("    s_endpgm")

    u = 1
    vPUB0, vPUB1, vRECP, vRECG, vCNT, vMB, vOUT, vLO, vLR, vT0, vT1, vZ = 16, 17, 18, 19, 20, 21, 22, 23, 24, 25, 26, 27
    vF = 28
    vM = vF + W
    vD = 64
    P = 4
    assert vM + 2 * W <= vD
    e("L_svc:")
    if ts:
        for k in range(1, 13):
            e(f"    s_mov_b32 s{70 + 2 * k}, 0")
    if o.nosvc:
        e("    s_barrier")
        e("    s_branch L_fin")
    e(f"    s_load_dword s{sCTX}, s[12:13], 0")
    stamp(1)
    e(f"    s_lshl_b32 s{sB}, s{sH}, 9")
    e(f"    s_add_u32 s{sB}, s{sB}, {REC_OFF:#x}")
    e(f"    v_and_b32 v{u}, 31, v{vLANE}")
    e(f"    v_lshrrev_b32 v{u+1}, 5, v{vLANE}")
    e(f"    v_lshl_add_u32 v{vRECP}, v{u+1}, 3, s{sB}")
    e(f"    v_lshl_add_u32 v{vRECG}, v{u}, 4, v{vRECP}")
    e(f"    s_lshl_b32 s{sD}, s{sS}, 4")
    e(f"    v_add_u32 v{vRECP}, s{sD}, v{vRECP}")
    e(f"    v_mul_u32_u24 v{vLR}, {2 * RECW}, v{u+1}")
    e(f"    s_lshl_b32 s{sD}, s{sH}, 5")
    e(f"    v_mov_b32 v{vCNT}, s{sD}")
    e(f"    s_lshl_b32 s{sA}, s{sH}, 16")
    e(f"    s_lshl_b32 s{sD}, s{sS}, 11")
    e(f"    s_add_u32 s{sD}, s{sD}, s{sA}")
    e(f"    v_lshl_add_u32 v{vMB}, v{vLANE}, 4, s{sD}")
    e(f"    v_mov_b32 v12, -1")
    e(f"    v_mov_b32 v13, -1")
    e(f"    s_cmp_lg_u32 s{sS}, 0")
    e("    s_cbranch_scc1 L_nolead")
    e(f"    global_store_dwordx2 v{vRECG}, v[12:13], s[18:19] sc1")
    e("    s_waitcnt vmcnt(0)")
    e("    s_mov_b64 exec, 1")
    e(f"    global_store_dword v{vCNT}, v12, s[16:17] sc1")
    e("    s_mov_b64 exec, -1")
    e("L_nolead:")
    e(f"    global_load_dwordx4 v[{P}:{P+3}], v{vMB}, s[18:19] sc1")
    e(f"    global_load_dwordx4 v[{P+4}:{P+7}], v{vMB}, s[18:19] offset:1024 sc1")
    e(f"    v_lshrrev_b32 v12, 2, v{vLANE}")
    e(f"    v_and_b32 v13, 3, v{vLANE}")
    e(f"    v_lshl_add_u32 v14, v13, 4, s{sA}")
    e(f"    v_lshl_add_u32 v14, v12, 11, v14")
    if o.swz:
        e(f"    v_lshlrev_b32 v15, 1, v12")
        e(f"    v_xor_b32 v15, s{sS}, v15")
    else:
        e(f"    v_mov_b32 v15, s{sS}")
    e(f"    v_lshl_add_u32 v{vPUB0}, v15, 6, v14")
    e(f"    v_add_u32 v{vPUB1}, 0x8000, v{vPUB0}")
    e(f"    v_lshlrev_b32 v{vT0}, 2, v12")
    e(f"    v_add_u32 v{vT1}, 64, v{vT0}")
    e(f"    s_lshl_b32 s{sA}, s{sH}, 10")
    e(f"    s_and_b32 s{sB}, s{sS}, 11")
    e(f"    s_lshl_b32 s{sB}, s{sB}, 6")
    e(f"    s_add_u32 s{sA}, s{sA}, s{sB}")
    e(f"    s_and_b32 s{sB}, s{sS}, 16")
    e(f"    s_lshl_b32 s{sB}, s{sB}, 4")
    e(f"    s_add_u32 s{sA}, s{sA}, s{sB}")
    e(f"    s_and_b32 s{sB}, s{sS}, 4")
    e(f"    s_lshl_b32 s{sB}, s{sB}, 1")
    e(f"    s_add_u32 s{sA}, s{sA}, s{sB}")
    e(f"    v_lshl_add_u32 v{vOUT}, v13, 4, s{sA}")
    e(f"    v_bfe_u32 v15, v{vLANE}, 4, 1")
    e(f"    v_lshl_add_u32 v{vOUT}, v15, 2, v{vOUT}")
    e(f"    v_lshl_add_u32 v{vOUT}, v{u+1}, 1, v{vOUT}")
    e(f"    v_lshlrev_b32 v{vLO}, 4, v{vLANE}")
    e(f"    v_mov_b32 v{vZ}, 0")
    e("    s_mov_b32 s40, 1")
    e("    s_mov_b32 s41, 1")
    e("    s_mov_b32 s42, 0x000f000f")
    e("    s_mov_b32 s43, 0x000f000f")
    e("    s_movk_i32 s44, 0x3ff")
    e(f"    s_getreg_b32 s{sX}, hwreg(HW_REG_XCC_ID, 0, 4)")
    e("    s_waitcnt lgkmcnt(0)")
    e(f"    s_cmp_gt_i32 s{sCTX}, 0")
    e(f"    s_cselect_b32 s{sC}, {SCALE:#x}, 0")
    e("    s_waitcnt vmcnt(0)")
    stamp(2)
    for r in range(8):
        e(f"    v_and_b32 v{P + r}, s44, v{P + r}")
    e(f"    s_mov_b32 s{sT}, -1")
    e("L_tag:")
    e(f"    s_add_u32 s{sT}, s{sT}, 1")
    for r in range(8):
        e(f"    v_xor_b32 v{vD + r}, s{sT}, v{P + r}")
    e(f"    v_min3_u32 v{u}, v{vD}, v{vD+1}, v{vD+2}")
    e(f"    v_min3_u32 v{u}, v{u}, v{vD+3}, v{vD+4}")
    e(f"    v_min3_u32 v{u}, v{u}, v{vD+5}, v{vD+6}")
    e(f"    v_min_u32 v{u}, v{u}, v{vD+7}")
    e(f"    v_cmp_eq_u32 vcc, 0, v{u}")
    e("    s_cbranch_vccnz L_tag")

    def wait_progress(val, lab):
        e(f"    s_mov_b32 s{sB}, {SPIN:#x}")
        e(f"{lab}:")
        e("    s_sleep 2")
        e(f"    ds_read_b32 v{u}, v{vZ} offset:{LDS_PROG}")
        e(f"    s_sub_u32 s{sB}, s{sB}, 1")
        e("    s_waitcnt lgkmcnt(0)")
        e(f"    v_cmp_gt_i32 vcc, {val}, v{u}")
        e(f"    s_cbranch_scc1 {lab}x")
        e(f"    s_cbranch_vccnz {lab}")
        e(f"{lab}x:")

    wait_progress(1, "L_p1")
    e(f"    s_mov_b32 s{sB}, {SPIN:#x}")
    e("L_w2:")
    e(f"    global_load_dword v{u}, v{vCNT}, s[16:17] sc1")
    e(f"    s_sub_u32 s{sB}, s{sB}, 1")
    e("    s_waitcnt vmcnt(0)")
    e(f"    v_cmp_eq_u32 vcc, 0, v{u}")
    e("    s_cbranch_scc1 L_w2x")
    e("    s_cbranch_vccnz L_w2")
    e("L_w2x:")
    stamp(9)
    e(f"    s_mov_b32 s{sB}, {SPIN:#x}")
    e("L_w1:")
    e("    s_sleep 2")
    for j in range(W // 2):
        e(f"    ds_read_b128 v[{vM + 4 * j}:{vM + 4 * j + 3}], v{vLR} offset:{LDS_REC + 16 * j}")
    e(f"    s_sub_u32 s{sB}, s{sB}, 1")
    e("    s_waitcnt lgkmcnt(0)")
    e(f"    v_max_u32 v{u}, v{vM}, v{vM + 1}")
    for j in range(2, 2 * W, 2):
        e(f"    v_max3_u32 v{u}, v{u}, v{vM + j}, v{vM + j + 1}")
    e(f"    v_cmp_eq_u32 vcc, -1, v{u}")
    e("    s_cbranch_scc1 L_w1x")
    e("    s_cbranch_vccnz L_w1")
    e("L_w1x:")
    stamp(3)
    e(f"    v_max_f32 v{u+1}, v{vM}, v{vM + 1}")
    for j in range(2, W, 2):
        e(f"    v_max3_f32 v{u+1}, v{u+1}, v{vM + j}, v{vM + j + 1}")
    for w in range(W):
        e(f"    v_sub_f32 v{vF + w}, v{vM + w}, v{u+1}")
    for w in range(W):
        e(f"    v_mul_f32 v{vF + w}, s{sC}, v{vF + w}")
    for w in range(W):
        e(f"    v_exp_f32 v{vF + w}, v{vF + w}")
    e(f"    s_lshl_b32 s{sD}, s{sX}, 12")
    e(f"    s_or_b32 s{sD}, s{sD}, s{sT}")
    e(f"    v_or_b32 v{u+1}, s{sD}, v{u+1}")
    e(f"    v_mul_f32 v{u+2}, v{vF}, v{vM + W}")
    for w in range(1, W):
        e(f"    v_fmac_f32 v{u+2}, v{vF + w}, v{vM + W + w}")
    e("    s_mov_b64 exec, s[40:41]")
    e(f"    global_store_dwordx2 v{vRECP}, v[{u+1}:{u+2}], s[18:19] sc1")
    e("    s_mov_b64 exec, -1")
    stamp(4)
    wait_progress(2, "L_p2")
    stamp(10)
    e(f"    s_mov_b32 s{sB}, {SPIN:#x}")
    e("L_w3:")
    e(f"    global_load_dwordx2 v[{u+1}:{u+2}], v{vRECG}, s[18:19] sc1")
    e(f"    s_sub_u32 s{sB}, s{sB}, 1")
    e("    s_waitcnt vmcnt(0)")
    e(f"    v_max_u32 v{u}, v{u+1}, v{u+2}")
    e(f"    v_cmp_eq_u32 vcc, -1, v{u}")
    e("    s_cbranch_scc1 L_w3x")
    e("    s_cbranch_vccnz L_w3")
    e("L_w3x:")
    stamp(5)

    def half_red(op, a, b):
        for ror in (1, 2, 4, 8):
            e("    s_nop 1")
            e(f"    {op}_dpp v{a}, v{a}, v{a} row_ror:{ror}{DPP}")
        e(f"    v_mov_b32 v{b}, v{a}")
        e("    s_nop 1")
        e(f"    v_permlane16_swap_b32 v{b}, v{a}")
        e(f"    {op} v{a}, v{a}, v{b}")

    e(f"    ds_bpermute_b32 v{vT0}, v{vT0}, v{u+1}")
    e(f"    ds_bpermute_b32 v{vT1}, v{vT1}, v{u+1}")
    e(f"    v_bfe_u32 v{u}, v{u+1}, 12, 4")
    e(f"    v_cmp_ne_u32 s[46:47], s{sX}, v{u}")
    e(f"    v_and_b32 v{u+5}, 0xffff0000, v{u+1}")
    e(f"    v_mov_b32 v{u+3}, v{u+5}")
    half_red("v_max_f32", u + 3, u + 4)
    e(f"    v_sub_f32 v{u+5}, v{u+5}, v{u+3}")
    e(f"    v_mul_f32 v{u+5}, s{sC}, v{u+5}")
    e(f"    v_exp_f32 v{u+5}, v{u+5}")
    for w in range(W):
        e(f"    v_sub_f32 v{vF + w}, v{vM + w}, v{u+3}")
    for w in range(W):
        e(f"    v_mul_f32 v{vF + w}, s{sC}, v{vF + w}")
    e(f"    v_mul_f32 v{u+2}, v{u+5}, v{u+2}")
    half_red("v_add_f32", u + 2, u + 4)
    e(f"    v_rcp_f32 v{u+2}, v{u+2}")
    for w in range(W):
        e(f"    v_exp_f32 v{vF + w}, v{vF + w}")
    e("    s_nop 0")
    for w in range(W):
        e(f"    v_mul_f32 v{vF + w}, v{vF + w}, v{u+2}")
    stamp(6)
    e("    s_waitcnt lgkmcnt(0)")
    e(f"    s_mov_b32 s{sB}, {0 if o.nopoll else SPIN:#x}")
    if o.prio:
        e(f"    s_setprio {o.prio}")
    if o.local:
        e("    s_cmp_eq_u64 s[46:47], 0")
    e("    s_barrier")
    for hf in range(2):
        for w in range(W):
            d = vD + 4 * (hf * W + w)
            e(f"    ds_read_b128 v[{d}:{d+3}], v{vLO} offset:{LDS_O + 2048 * w + 1024 * hf}")
    for hf in range(2):
        d0 = vD + 4 * hf * W
        for w in range(W):
            e(f"    s_waitcnt lgkmcnt({min(15, 2 * W - 1 - (hf * W + w))})")
            d = d0 + 4 * w
            f2 = vF + (w & ~1)
            sel = w & 1
            for r in (0, 2):
                if w == 0:
                    e(f"    v_pk_mul_f32 v[{d0+r}:{d0+r+1}], v[{f2}:{f2+1}], v[{d+r}:{d+r+1}] op_sel:[{sel},0] op_sel_hi:[{sel},1]")
                else:
                    e(f"    v_pk_fma_f32 v[{d0+r}:{d0+r+1}], v[{f2}:{f2+1}], v[{d+r}:{d+r+1}], v[{d0+r}:{d0+r+1}] op_sel:[{sel},0,0] op_sel_hi:[{sel},1,1]")
        for r in range(4):
            e(f"    v_bfi_b32 v{d0 + r}, s44, v{vT0 + hf}, v{d0 + r}")
        if o.local:
            e(f"    s_cbranch_scc1 L_loc{hf}")
            e(f"    global_store_dwordx4 v{vPUB0 + hf}, v[{d0}:{d0+3}], s[18:19] sc1")
            e(f"    s_branch L_pub{hf}")
            e(f"L_loc{hf}:")
            e(f"    global_store_dwordx4 v{vPUB0 + hf}, v[{d0}:{d0+3}], s[18:19]")
            e(f"L_pub{hf}:")
        else:
            e(f"    global_store_dwordx4 v{vPUB0 + hf}, v[{d0}:{d0+3}], s[18:19] sc1")
    stamp(7)
    e("L_poll:")
    e(f"    global_load_dwordx4 v[{P}:{P+3}], v{vMB}, s[18:19] sc1")
    e(f"    global_load_dwordx4 v[{P+4}:{P+7}], v{vMB}, s[18:19] offset:1024 sc1")
    e(f"    s_sub_u32 s{sB}, s{sB}, 1")
    e("    s_waitcnt vmcnt(1)")
    for r in range(4):
        e(f"    v_xor_b32 v{P + r}, s{sT}, v{P + r}")
    e(f"    v_or3_b32 v1, v{P}, v{P+1}, v{P+2}")
    e("    s_waitcnt vmcnt(0)")
    for r in range(4, 8):
        e(f"    v_xor_b32 v{P + r}, s{sT}, v{P + r}")
    e(f"    v_or3_b32 v2, v{P+3}, v{P+4}, v{P+5}")
    e(f"    v_or3_b32 v1, v1, v{P+6}, v{P+7}")
    e("    v_bitop3_b32 v1, v1, v2, s44 bitop3:0xa8")
    e("    v_cmp_ne_u32 vcc, 0, v1")
    e(f"    v_pk_add_f32 v[{P}:{P+1}], v[{P}:{P+1}], v[{P+4}:{P+5}]")
    e(f"    v_pk_add_f32 v[{P+2}:{P+3}], v[{P+2}:{P+3}], v[{P+6}:{P+7}]")
    e("    s_cbranch_scc1 L_pollx")
    e("    s_cbranch_vccnz L_poll")
    e("L_pollx:")
    stamp(8)
    e(f"    v_permlane32_swap_b32 v{P}, v{P+1}")
    e(f"    v_permlane32_swap_b32 v{P+2}, v{P+3}")
    e(f"    v_add_f32 v{P}, v{P}, v{P+1}")
    e(f"    v_add_f32 v{P+2}, v{P+2}, v{P+3}")
    e("    s_nop 1")
    e(f"    v_permlane16_swap_b32 v{P}, v{P+2}")
    e(f"    v_add_f32 v{P}, v{P}, v{P+2}")
    e("    s_nop 1")
    e(f"    v_add_f32_dpp v{P}, v{P}, v{P} row_ror:4{DPP}")
    e("    s_nop 1")
    e(f"    v_add_f32_dpp v{P}, v{P}, v{P} row_ror:8{DPP}")
    e(f"    v_cvt_pk_bf16_f32 v{P}, v{P}, v{P}")
    e("    s_mov_b64 exec, s[42:43]")
    e(f"    global_store_short v{vOUT}, v{P}, s[14:15]{' ' + o.outflags if o.outflags else ''}")
    e("L_fin:")
    if ts:
        e("    s_mov_b64 exec, -1")
        e("    s_waitcnt vmcnt(0)")
        stamp(12)
        e("    s_getreg_b32 s96, hwreg(HW_REG_XCC_ID)")
        e("    s_getreg_b32 s97, hwreg(HW_REG_HW_ID)")
        e("    s_waitcnt lgkmcnt(0)")
        e(f"    s_lshl_b32 s{sA}, s2, 4")
        e(f"    s_add_u32 s{sA}, s{sA}, s{sW}")
        e(f"    s_lshl_b32 s{sA}, s{sA}, 6")
        e(f"    s_add_u32 s{sA}, s{sA}, {TS_OFF:#x}")
        e(f"    v_mov_b32 v1, s{sA}")
        for k in range(13):
            e(f"    v_mov_b32 v{16 + k}, s{70 + 2 * k}")
        e("    v_mov_b32 v29, s96")
        e("    v_mov_b32 v30, s97")
        e(f"    v_mov_b32 v31, s{sB}")
        e("    s_mov_b64 exec, 1")
        for k in range(4):
            e(f"    global_store_dwordx4 v1, v[{16 + 4 * k}:{16 + 4 * k + 3}], s[18:19] offset:{16 * k}")
        if ts.startswith("enc"):
            k, mul, add, wv, xc = [int(x) for x in ts.split(":")[1:]]
            e(f"    s_cmp_lg_u32 s{sW}, {wv}")
            e("    s_cbranch_scc1 L_done")
            if xc >= 0:
                e("    s_and_b32 s96, s96, 15")
                e(f"    s_cmp_lg_u32 s96, {xc}")
                e("    s_cbranch_scc1 L_done")
            e(f"    s_sub_u32 s{sA}, s{70 + 2 * k}, s70")
            e(f"    s_mul_i32 s{sA}, s{sA}, {mul}")
            e(f"    s_add_u32 s{sA}, s{sA}, {add}")
            e(f"    s_min_u32 s{sA}, s{sA}, 100000")
            e("L_enc:")
            e("    s_memrealtime s[98:99]")
            e("    s_waitcnt lgkmcnt(0)")
            e(f"    s_sub_u32 s{sB}, s98, s70")
            e(f"    s_cmp_lt_u32 s{sB}, s{sA}")
            e("    s_cbranch_scc1 L_enc")
    e("L_done:")
    e("    s_endpgm")

    e('.section .rodata,"a"')
    e(".p2align 6")
    e(f".amdhsa_kernel {kn}")
    e(f"  .amdhsa_next_free_vgpr {nfv}")
    e("  .amdhsa_next_free_sgpr 102")
    e(f"  .amdhsa_accum_offset {accum}")
    e("  .amdhsa_group_segment_fixed_size 0")
    e("  .amdhsa_kernarg_size 64")
    e("  .amdhsa_user_sgpr_count 2")
    e("  .amdhsa_user_sgpr_kernarg_segment_ptr 1")
    e("  .amdhsa_system_sgpr_workgroup_id_x 1")
    e("  .amdhsa_float_denorm_mode_32 3")
    e(".end_amdhsa_kernel")
    return HEADER + "\n".join(L) + "\n"


if __name__ == "__main__":
    ap = argparse.ArgumentParser()
    ap.add_argument("out")
    ap.add_argument("opts", nargs="*")
    a = ap.parse_args()
    o = Opt()
    for kv in a.opts:
        k, v = kv.split("=", 1)
        cur = getattr(Opt, k)
        setattr(o, k, type(cur)(v.replace("+", " ")) if isinstance(cur, str) else int(v, 0))
    open(a.out, "w").write(gen(o))
```

```python
import argparse

NAME = "standalone__paged_block_table_kv_radixattention__decode"

HEADER = """; Kernarg layout for this problem (64 bytes, ptrs only, base s[0:1]):
"""

KV_BYTES = 0x2000000
SCALE = 0x3DB8AA3B
NEG = 0xFF000000
REC_OFF = 0x80000
TS_OFF = 0x100000
DPP = " row_mask:0xf bank_mask:0xf"
SPIN = 0x40000


class Opt:
    W = 4
    F = 6
    Fend = 0
    cend = 64
    R = 20
    kvflags = "nt"
    ts = ""
    tsmask = 0x1fff
    lds = 8448
    hmap = "xcd"
    local = 1
    swz = 1
    cflag = 12
    clate = 52
    outflags = ""
    nopoll = 0
    nosvc = 0
    prio = 0
    pf = 3
    pfflags = ""
    pfv = 1
    reflags = "nt"
    pfi = ""
    pfhit = 1
    Fv = 0
    nd = 0
    c3 = 53
    pd = 3
    pfl = "V0a V0b V1a"
    free = "K15 V15"
    Fmid = 0
    cm0 = 28
    cm1 = 34
    tsl = ""
    hp = "1:V:13:2:58"
    hplain = 2
    hflags = ""
    cpf = 0
    cycs = 0
    Fpat = ""
    bpos = 0
    pfirst = 0
    owarm = 0
    apre = 0
    vlast = 1
    qpos = 1
    q1 = 1


def gen(o):
    W, F, R = o.W, o.F, o.R
    NG = 64 // W
    ND = o.nd
    NL = 4 * NG - 2 * ND
    ts = o.ts
    L = []
    e = L.append

    def stamp(k):
        if ts and (o.tsmask >> k) & 1:
            e(f"    {'s_memtime' if ts == 'cyc' else 's_memrealtime'} s[{70 + 2 * k}:{71 + 2 * k}]")

    vLANE, vOFF, vREM, vMAX = 0, 1, 2, 3
    vMASK = 4
    vACC0, vACC1 = 8, 12
    vQ = 16
    vA = 32
    vY = 40
    vNEG, vOADDR, vBT, vADDR, vPROG, vPADDR = 42, 43, 44, 45, 46, 47
    t = 48
    vX = 56
    vR = (vX + NG + 3) // 4 * 4
    vH = vR + 4 * R
    vAP = vH + 8
    nfv = max(vAP + (4 * NG if o.apre else 0), 96 + 8 * W + 14 * W * ND)
    accum = (nfv + 3) // 4 * 4
    sW, sS, sH, sCTX, sC = 3, 28, 29, 30, 31
    sA, sB, sD, sE, sT, sX = 64, 65, 66, 67, 68, 69

    LDS_REC, LDS_PROG, LDS_O = 0, 192, 256
    LDS_P = LDS_O + 2048 * W
    RECW = 4 * W
    assert o.lds >= LDS_P + 512 * W * ND and 4 * RECW <= LDS_PROG
    kn = NAME + "_kernel"
    e(f"; @launch grid=(256,1,1) block=({64 * (W + 1)},1,1) lds={o.lds}")
    e('.amdgcn_target "amdgcn-amd-amdhsa--gfx950"')
    e(".text")
    e(f".globl {kn}")
    e(".p2align 8")
    e(f".type {kn},@function")
    e(f"{kn}:")
    e("    s_load_dwordx16 s[4:19], s[0:1], 0")
    stamp(0)
    e(f"    s_lshr_b32 s{sS}, s2, 3")
    e(f"    s_cmp_ge_u32 s{sS}, 32")
    e("    s_cbranch_scc1 L_done")
    e(f"    v_lshrrev_b32 v{t}, 6, v0")
    e(f"    v_and_b32 v{vLANE}, 63, v0")
    e(f"    v_readfirstlane_b32 s{sW}, v{t}")
    e(f"    v_lshlrev_b32 v{t+1}, 2, v{vLANE}")
    e(f"    v_mov_b32 v{t+2}, -1")
    e(f"    ds_write_b32 v{t+1}, v{t+2}")
    if o.hmap == "mix":
        e(f"    s_add_u32 s{sH}, s2, s{sS}")
        e(f"    s_and_b32 s{sH}, s{sH}, 7")
    else:
        e(f"    s_and_b32 s{sH}, s2, 7")
    e(f"    s_cmp_eq_u32 s{sW}, {W}")
    e("    s_cbranch_scc0 L_data")
    if o.cpf:
        if o.cpf < 32:
            e(f"    s_cmp_ge_u32 s{sS}, {o.cpf}")
            e("    s_cbranch_scc1 L_nocpf")
        e("    s_getpc_b64 s[34:35]")
        e("L_pc:")
        e(f"    v_lshlrev_b32 v{t+1}, 7, v{vLANE}")
        e(f"    v_min_u32 v{t+1}, L_done-L_pc, v{t+1}")
        e(f"    global_load_dword v{t+2}, v{t+1}, s[34:35]")
        e("L_nocpf:")
    e("    s_waitcnt lgkmcnt(0)")
    e("    s_barrier")
    e("    s_branch L_svc")

    lgW = W.bit_length() - 1
    tok_off = [i * 128 * W for i in range(NG)]
    e("L_data:")
    e(f"    s_lshl_b32 s{sA}, s{sW}, 5")
    e(f"    s_add_u32 s{sB}, s{sA}, s{sS}")
    e(f"    s_andn2_b32 s{sA}, s{sB}, 3")
    e(f"    v_and_b32 v{t}, {NG - 1}, v{vLANE}")
    e(f"    v_lshl_add_u32 v{vBT}, v{t}, {5 + lgW}, s{sA}")
    e(f"    v_lshrrev_b32 v{t+1}, 4, v{vLANE}")
    e(f"    v_lshl_add_u32 v{vREM}, s{sB}, 2, v{t+1}")
    e(f"    v_lshl_add_u32 v{t+5}, v{t}, {7 + lgW}, v{vREM}")
    e(f"    v_and_b32 v{t}, 15, v{vLANE}")
    e(f"    v_lshlrev_b32 v{t+2}, 4, v{t}")
    e(f"    v_lshrrev_b32 v{t+3}, 3, v{t}")
    e(f"    v_lshl_add_u32 v{t+3}, s{sH}, 1, v{t+3}")
    e(f"    v_lshl_add_u32 v{t+3}, v{t+3}, 9, v{t+2}")
    e(f"    s_and_b32 s{sE}, s{sS}, 3")
    e(f"    s_lshl_b32 s{sE}, s{sE}, 5")
    e(f"    s_add_u32 s{sE}, s{sE}, s{sH}")
    e(f"    s_lshl_b32 s{sE}, s{sE}, 9")
    e(f"    v_lshl_add_u32 v{vOFF}, v{t+1}, 12, v{t+2}")
    e(f"    v_add_u32 v{vOFF}, s{sE}, v{vOFF}")
    e(f"    v_xor_b32 v{t+4}, 0x200, v{t+3}")
    if o.pfl:
        e(f"    v_lshl_add_u32 v{vADDR}, s{sA}, 14, v{vOFF}")
    e(f"    s_mov_b32 s22, {KV_BYTES:#x}")
    e("    s_mov_b32 s23, 0x20000")
    e(f"    v_mov_b32 v{t+6}, s22")
    ops = []
    pfl_ = [(x[0], int(x[1:-1]), "ab".index(x[-1])) for x in o.pfl.split()]
    o.pf = len(pfl_)
    vorder = list(range(ND, NG))
    if o.vlast:
        vorder = vorder[-1:] + vorder[:-1]
    pfset = set()
    if o.pfhit:
        for tn, gi, hf in pfl_:
            pfset.add(2 * gi + hf if tn == "K" else 2 * NG + 2 * vorder.index(gi) + hf)

    freeset = set(pfset)
    for x in o.free.split():
        gi = int(x[1:])
        base = 2 * gi if x[0] == "K" else 2 * NG + 2 * vorder.index(gi)
        freeset |= {base, base + 1}

    hps = [tuple(y if y in "KV" else int(y) for y in x.split(":")) for x in o.hp.split()]

    def vm(name, text):
        e("    " + text)
        ops.append(name)

    waited = [-1]

    def wait_for(name):
        k = ops.index(name)
        if k > waited[0]:
            e(f"    s_waitcnt vmcnt({len(ops) - 1 - k})")
            waited[0] = k

    def prefetch():
        pfl = (" " + o.pfflags) if o.pfflags else ""
        prev = 0
        for n, (tn, gi, hf) in enumerate(pfl_):
            b = vR + 4 * (R - 1)
            if gi != prev:
                e(f"    v_add_u32 v{vADDR}, {((gi - prev) * (W << 19)) & 0xffffffff:#x}, v{vADDR}")
                prev = gi
            vm(("pf", n), f"global_load_dwordx4 v[{b}:{b+3}], v{vADDR}, {'s[8:9]' if tn == 'V' else 's[6:7]'} offset:{256 * hf}{pfl}")

    def qloads():
        if o.q1:
            vm("q", f"global_load_dwordx4 v[{vQ}:{vQ+3}], v{t+3}, s[4:5]")
            return
        vm("q0", f"global_load_dwordx4 v[{vQ}:{vQ+3}], v{t+3}, s[4:5]")
        vm("q1", f"global_load_dwordx4 v[{vQ+8}:{vQ+11}], v{t+4}, s[4:5]")
        vm("q2", f"global_load_dwordx4 v[{vQ+4}:{vQ+7}], v{t+3}, s[4:5] offset:256")
        vm("q", f"global_load_dwordx4 v[{vQ+12}:{vQ+15}], v{t+4}, s[4:5] offset:256")

    def qspread():
        if not o.q1:
            return
        for r in range(4):
            e(f"    v_mov_b32 v{vQ + 8 + r}, v{vQ + r}")
        for r in range(4):
            e(f"    v_permlane32_swap_b32 v{vQ + r}, v{vQ + 8 + r}")
        for r in range(4):
            e(f"    v_mov_b32 v{vQ + 4 + r}, v{vQ + r}")
        for r in range(4):
            e(f"    v_mov_b32 v{vQ + 12 + r}, v{vQ + 8 + r}")
        for r in range(4):
            e(f"    v_permlane16_swap_b32 v{vQ + r}, v{vQ + 4 + r}")
        for r in range(4):
            e(f"    v_permlane16_swap_b32 v{vQ + 8 + r}, v{vQ + 12 + r}")

    if o.q1:
        e(f"    v_lshlrev_b32 v{t+4}, 8, v{t+1}")
        e(f"    v_xor_b32 v{t+3}, v{t+3}, v{t+4}")
    e("    s_waitcnt lgkmcnt(0)")
    if o.pfirst:
        prefetch()
    vm("bt", f"global_load_dword v{vBT}, v{vBT}, s[10:11]")
    e(f"    s_load_dword s{sCTX}, s[12:13], 0")
    stamp(1)
    if o.qpos == 0:
        qloads()
    if o.bpos == 0:
        e("    s_barrier")
    if not o.pfirst:
        prefetch()
    if o.bpos == 1:
        e("    s_barrier")
    if o.qpos == 1:
        qloads()
    e("    s_mov_b64 s[20:21], s[6:7]")
    e("    s_waitcnt lgkmcnt(0)")
    e(f"    s_cmp_gt_i32 s{sCTX}, 0")
    e(f"    s_cselect_b32 s{sCTX}, s{sCTX}, 0x2000")
    e(f"    s_cselect_b32 s{sC}, {SCALE:#x}, 0")
    e(f"    v_cmp_gt_i32 vcc, s{sCTX}, v{t+5}")
    wait_for("bt")
    e(f"    v_lshlrev_b32 v{vBT}, 16, v{vBT}")
    e(f"    v_cndmask_b32 v{vBT}, v{t+6}, v{vBT}, vcc")
    e("    s_nop 1")
    fl = (" " + o.kvflags) if o.kvflags else ""

    def slot(n):
        return vR + 4 * (n % R)

    def is_hit(n):
        return n in pfset

    issued = [0]

    def issue():
        n = issued[0]
        isv = n >= 2 * NG
        i, hf = vorder[(n - 2 * NG) >> 1] if isv else n >> 1, n & 1
        srd = "s[24:27]" if isv else "s[20:23]"
        b = slot(n)
        if hf == 0:
            e(f"    v_add_u32_dpp v{vADDR}, v{vBT}, v{vOFF} row_newbcast:{i}{DPP}")
        f2 = ((" " + o.reflags) if o.reflags else "") if is_hit(n) else fl
        if n >= NL - 2 * o.hplain:
            f2 = ""
        vm(("ld", n), f"buffer_load_dwordx4 v[{b}:{b+3}], v{vADDR}, {srd}, 0 offen offset:{256 * hf}{f2}")
        issued[0] += 1

    def inflight():
        return sum(1 for x in ops[waited[0] + 1:] if x[0] == "pf" or (x[0] == "ld" and x[1] not in freeset))

    def refill(win):
        while issued[0] < NL and (issued[0] in freeset or inflight() < win):
            issue()

    refill(F)
    if o.qpos == 2:
        qloads()
    if o.bpos == 2:
        e("    s_barrier")
    stamp(2)
    if ts:
        for k in list(range(1, 13)):
            if not ((o.tsmask >> k) & 1) or k in (8,) and False:
                e(f"    s_mov_b32 s{70 + 2 * k}, 0")
    e("    s_mov_b64 s[24:25], s[8:9]")
    e("    s_mov_b32 s26, s22")
    e("    s_mov_b32 s27, 0x20000")
    e(f"    v_sub_u32 v{vREM}, s{sCTX}, v{vREM}")
    for i in range(NG):
        e(f"    v_mov_b32 v{vX + i}, 0")
    e(f"    v_mov_b32 v{vY}, 0")
    e(f"    v_mov_b32 v{vY + 1}, 0")
    e(f"    v_mov_b32 v{vNEG}, {NEG:#x}")
    e(f"    v_mov_b32 v{vMAX}, v{vNEG}")

    def late_consts():
        e(f"    v_and_b32 v{t+5}, 1, v{vLANE}")
        e(f"    v_lshlrev_b32 v{t+5}, 4, v{t+5}")
        e(f"    v_mov_b32 v{t+6}, 0xffff")
        e(f"    v_lshlrev_b32 v{t+5}, v{t+5}, v{t+6}")
        e(f"    v_bfe_u32 v{t+6}, v{vLANE}, 1, 2")
        for r in range(4):
            e(f"    v_cmp_eq_u32 vcc, {r}, v{t+6}")
            e("    s_nop 1")
            e(f"    v_cndmask_b32 v{vMASK + r}, 0, v{t+5}, vcc")
        e(f"    s_lshl_b32 s{sD}, s{sW}, 11")
        e(f"    v_lshl_add_u32 v{vOADDR}, v{vLANE}, 4, s{sD}")
        e(f"    s_lshl_b32 s{sD}, s{sW}, 2")
        e(f"    v_mov_b32 v{vPROG}, s{sD}")
        if hps:
            e(f"    v_bfe_u32 v{t+5}, v{vLANE}, 2, 2")
            e(f"    v_and_b32 v{t+6}, 48, v{vLANE}")
            e(f"    v_add_lshl_u32 v{vH}, v{t+5}, v{t+6}, 2")
            e(f"    v_and_b32 v{t+5}, 3, v{vLANE}")
            e(f"    v_lshlrev_b32 v{t+5}, 7, v{t+5}")
            e(f"    v_lshl_add_u32 v{vH + 1}, v{t+6}, 8, v{t+5}")
        if ND:
            e(f"    s_mul_i32 s{sD}, s{sW}, {512 * ND}")
            e(f"    v_lshl_add_u32 v{vPADDR}, v{vLANE}, 2, s{sD}")

    def progress(val):
        e(f"    v_mov_b32 v{t+7}, {val}")
        e("    s_mov_b64 exec, 1")
        e(f"    ds_write_b32 v{vPROG}, v{t+7} offset:{LDS_PROG}")
        e("    s_mov_b64 exec, -1")

    def finish_group(i):
        y = vY + (i & 1)
        x = vX + i
        for op in (
            f"v_add_f32_dpp v{x}, v{y}, v{x} row_ror:8{DPP}",
            f"v_cmp_lt_i32 vcc, {tok_off[i]}, v{vREM}",
            f"v_mov_b32 v{y}, 0",
            f"v_add_f32_dpp v{x}, v{x}, v{x} quad_perm:[1,0,3,2]{DPP}",
            "s_nop 1",
            f"v_add_f32_dpp v{x}, v{x}, v{x} quad_perm:[2,3,0,1]{DPP}",
            "s_nop 1",
            f"v_add_f32_dpp v{x}, v{x}, v{x} row_half_mirror{DPP}",
            f"v_cvt_pk_bf16_f32 v{x}, 0, v{x}",
            f"v_cndmask_b32 v{x}, v{vNEG}, v{x}, vcc",
            f"v_max_f32 v{vMAX}, v{vMAX}, v{x}",
        ):
            e("    " + op)

    def xred(op, a, b):
        for sw in ("v_permlane16_swap_b32", "v_permlane32_swap_b32"):
            e(f"    v_mov_b32 v{b}, v{a}")
            e("    s_nop 1")
            e(f"    {sw} v{b}, v{a}")
            e(f"    {op} v{a}, v{a}, v{b}")

    def areg(k):
        return vAP + 4 * k if o.apre else vA + 4 * (k & 1)

    def afrag(k):
        i = vorder[k]
        a = areg(k)
        e(f"    v_cvt_pk_bf16_f32 v{t}, v{vX + i}, v{vX + i}")
        for r in range(4):
            e(f"    v_and_b32 v{a + r}, v{t}, v{vMASK + r}")

    cflag, clate, cend, c3 = o.cflag * NG // 16, o.clate * NG // 16, o.cend * NG // 16, o.c3 * NG // 16

    def step(c):
        wait_for(("ld", c))
        win = o.Fend if (o.Fend and c >= cend) else (o.Fv if o.Fv and c >= 2 * NG - F else F)
        if o.Fpat and not (o.Fend and c >= cend):
            win = int(o.Fpat[c % len(o.Fpat)])
        if o.Fmid and o.cm0 <= c < o.cm1:
            win = o.Fmid
        refill(win)
        assert issued[0] - c <= R - 2 or issued[0] == NL
        for k, (hx, tn, g0, hcnt, hstep) in enumerate(hps):
            hv = vH + 2 + (k & 1)
            if c == hstep - 1:
                e(f"    ds_bpermute_b32 v{hv}, v{vH}, v{vBT} offset:{4 * g0}")
            if c == hstep:
                m = ((1 << (4 * hcnt)) - 1) * 0x00010001
                e(f"    s_xor_b32 s{sD}, s{sE}, {((hx & 3) << 14) | ((hx >> 2) << 9):#x}")
                e("    s_waitcnt lgkmcnt(0)")
                e(f"    v_add3_u32 v{hv}, v{hv}, v{vH + 1}, s{sD}")
                if hcnt < 4:
                    e(f"    s_mov_b32 exec_lo, {m:#x}")
                    e(f"    s_mov_b32 exec_hi, {m:#x}")
                srd = "s[24:27]" if tn == "V" else "s[20:23]"
                vm(("hp", k), f"buffer_load_dword v{vH + 4}, v{hv}, {srd}, 0 offen{' ' + o.hflags if o.hflags else ''}")
                if hcnt < 4:
                    e("    s_mov_b64 exec, -1")
        if str(c) in o.tsl.split():
            stamp(7 + o.tsl.split().index(str(c)))
        if c == cflag:
            progress(1)
        if c == clate:
            progress(2)
        if c == c3 and ND:
            progress(3)

    for x in list(ops[waited[0] + 1:ops.index("q") + 1]):
        if x[0] in ("pf", "ld") or x == "q":
            wait_for(x)
            refill(F)
    qspread()
    for x in list(ops[waited[0] + 1:]):
        if x[0] == "pf":
            wait_for(x)
            refill(F)
    for c in range(2 * NG):
        i, hf = c >> 1, c & 1
        step(c)
        if c == 0:
            stamp(3)
        if c in (NG // 2, NG, 3 * NG // 2) and not o.tsl:
            stamp(7 + (c - 1) // (NG // 2))
        b = slot(c)
        for r in range(4):
            e(f"    v_dot2c_f32_bf16 v{vX + i}, v{b + r}, v{vQ + 4 * hf + r}")
            e(f"    v_dot2c_f32_bf16 v{vY + (i & 1)}, v{b + r}, v{vQ + 8 + 4 * hf + r}")
        if hf == 0 and i > 0:
            finish_group(i - 1)
        if c == 1:
            late_consts()
    stamp(4)
    e("    s_nop 2")
    finish_group(NG - 1)
    xred("v_max_f32", vMAX, t)
    c0 = 2 * NG
    step(c0)
    for i in range(NG):
        e(f"    v_sub_f32 v{vX + i}, v{vX + i}, v{vMAX}")
    for i in range(NG):
        e(f"    v_mul_f32 v{vX + i}, s{sC}, v{vX + i}")
    for i in range(NG):
        e(f"    v_exp_f32 v{vX + i}, v{vX + i}")
    step(c0 + 1)
    for i in range(ND):
        e(f"    v_add_u32_dpp v{t+3}, v{vBT}, v{vOFF} row_newbcast:{i}{DPP}")
        e(f"    ds_write2st64_b32 v{vPADDR}, v{vX + i}, v{t+3} offset0:{LDS_P // 256 + 2 * i} offset1:{LDS_P // 256 + 2 * i + 1}")
    e(f"    v_bfe_u32 v{t+2}, v{vLANE}, 3, 1")
    e(f"    v_add_f32 v{t+1}, v{vX}, v{vX + 1}")
    for i in range(2, NG):
        e(f"    v_add_f32 v{t+1}, v{t+1}, v{vX + i}")
    e(f"    v_mad_u32_u24 v{t+2}, v{t+2}, {2 * RECW}, v{vPROG}")
    xred("v_add_f32", t + 1, t)
    e("    s_mov_b64 exec, 0x101")
    e(f"    ds_write2_b32 v{t+2}, v{vMAX}, v{t+1} offset0:{LDS_REC // 4} offset1:{LDS_REC // 4 + W}")
    e("    s_mov_b64 exec, -1")
    afrag(0)
    built = [1]
    stamp(5)
    for c in range(c0, NL):
        k, hf = (c - c0) >> 1, c & 1
        if c > c0 + 1:
            step(c)
        elif c == c0:
            e("    s_nop 1")
        if c in (c0 + 2 * NG // 3, c0 + 4 * NG // 3) and not o.tsl:
            stamp(10 if c == c0 + 2 * NG // 3 else 11)
        acc = vACC0 if hf == 0 else vACC1
        a = areg(k)
        b = slot(c)
        cc = "0" if k == 0 else f"v[{acc}:{acc+3}]"
        e(f"    v_mfma_f32_16x16x32_bf16 v[{acc}:{acc+3}], v[{a}:{a+3}], v[{b}:{b+3}], {cc}")
        if (hf == 0 or o.apre) and built[0] < len(vorder):
            afrag(built[0])
            built[0] += 1
    stamp(6)
    e("    s_nop 5")
    e(f"    ds_write_b128 v{vOADDR}, v[{vACC0}:{vACC0+3}] offset:{LDS_O}")
    e("    s_nop 0")
    e(f"    ds_write_b128 v{vOADDR}, v[{vACC1}:{vACC1+3}] offset:{LDS_O + 1024}")
    e("    s_waitcnt lgkmcnt(0)")
    if ts == "cyc":
        stamp(1)
    e("    s_barrier")
    if ts:
        e("    s_branch L_fin")
    else:
        e("    s_endpgm")

    u = 1
    vPUB0, vPUB1, vRECP, vRECG, vCNT, vMB, vOUT, vLO, vLR, vT0, vT1, vZ = 16, 17, 18, 19, 20, 21, 22, 23, 24, 25, 26, 27
    vF = 28
    vM = vF + W
    vD = 96
    vPL = 64
    vSM = 56
    vSV = vD + 8 * W
    vSA = vSV + 8 * W * ND
    vSP = vSA + 4 * W * ND
    vLA = 60
    P = 4
    assert vM + 2 * W <= vSM and o.pd <= 4
    e("L_svc:")
    if ts:
        for k in range(1, 13):
            e(f"    s_mov_b32 s{70 + 2 * k}, 0")
    if o.nosvc:
        e("    s_barrier")
        e("    s_branch L_fin")
    e(f"    s_load_dword s{sCTX}, s[12:13], 0")
    stamp(1)
    e(f"    s_lshl_b32 s{sB}, s{sH}, 9")
    e(f"    s_add_u32 s{sB}, s{sB}, {REC_OFF:#x}")
    e(f"    v_and_b32 v{u}, 31, v{vLANE}")
    e(f"    v_lshrrev_b32 v{u+1}, 5, v{vLANE}")
    e(f"    v_lshl_add_u32 v{vRECP}, v{u+1}, 3, s{sB}")
    e(f"    v_lshl_add_u32 v{vRECG}, v{u}, 4, v{vRECP}")
    e(f"    s_lshl_b32 s{sD}, s{sS}, 4")
    e(f"    v_add_u32 v{vRECP}, s{sD}, v{vRECP}")
    e(f"    v_mul_u32_u24 v{vLR}, {2 * RECW}, v{u+1}")
    e(f"    s_lshl_b32 s{sD}, s{sH}, 5")
    e(f"    v_mov_b32 v{vCNT}, s{sD}")
    e(f"    s_lshl_b32 s{sA}, s{sH}, 16")
    e(f"    s_lshl_b32 s{sD}, s{sS}, 11")
    e(f"    s_add_u32 s{sD}, s{sD}, s{sA}")
    e(f"    v_lshl_add_u32 v{vMB}, v{vLANE}, 4, s{sD}")
    e(f"    v_mov_b32 v12, -1")
    e(f"    v_mov_b32 v13, -1")
    e(f"    s_cmp_lg_u32 s{sS}, 0")
    e("    s_cbranch_scc1 L_nolead")
    e(f"    global_store_dwordx2 v{vRECG}, v[12:13], s[18:19] sc1")
    e("    s_waitcnt vmcnt(0)")
    e("    s_mov_b64 exec, 1")
    e(f"    global_store_dword v{vCNT}, v12, s[16:17] sc1")
    e("    s_mov_b64 exec, -1")
    e("L_nolead:")
    e(f"    global_load_dwordx4 v[{P}:{P+3}], v{vMB}, s[18:19] sc1")
    e(f"    global_load_dwordx4 v[{P+4}:{P+7}], v{vMB}, s[18:19] offset:1024 sc1")
    e(f"    v_lshrrev_b32 v12, 2, v{vLANE}")
    e(f"    v_and_b32 v13, 3, v{vLANE}")
    e(f"    v_lshl_add_u32 v14, v13, 4, s{sA}")
    e(f"    v_lshl_add_u32 v14, v12, 11, v14")
    if o.swz:
        e(f"    v_lshlrev_b32 v15, 1, v12")
        e(f"    v_xor_b32 v15, s{sS}, v15")
    else:
        e(f"    v_mov_b32 v15, s{sS}")
    e(f"    v_lshl_add_u32 v{vPUB0}, v15, 6, v14")
    e(f"    v_add_u32 v{vPUB1}, 0x8000, v{vPUB0}")
    e(f"    v_lshlrev_b32 v{vT0}, 2, v12")
    e(f"    v_add_u32 v{vT1}, 64, v{vT0}")
    e(f"    s_lshl_b32 s{sA}, s{sH}, 10")
    e(f"    s_and_b32 s{sB}, s{sS}, 11")
    e(f"    s_lshl_b32 s{sB}, s{sB}, 6")
    e(f"    s_add_u32 s{sA}, s{sA}, s{sB}")
    e(f"    s_and_b32 s{sB}, s{sS}, 16")
    e(f"    s_lshl_b32 s{sB}, s{sB}, 4")
    e(f"    s_add_u32 s{sA}, s{sA}, s{sB}")
    e(f"    s_and_b32 s{sB}, s{sS}, 4")
    e(f"    s_lshl_b32 s{sB}, s{sB}, 1")
    e(f"    s_add_u32 s{sA}, s{sA}, s{sB}")
    e(f"    v_lshl_add_u32 v{vOUT}, v13, 4, s{sA}")
    e(f"    v_bfe_u32 v15, v{vLANE}, 4, 1")
    e(f"    v_lshl_add_u32 v{vOUT}, v15, 2, v{vOUT}")
    e(f"    v_lshl_add_u32 v{vOUT}, v{u+1}, 1, v{vOUT}")
    e(f"    v_lshlrev_b32 v{vLO}, 4, v{vLANE}")
    if o.owarm == 1:
        e(f"    global_load_ushort v14, v{vOUT}, s[14:15]")
    e(f"    v_mov_b32 v{vZ}, 0")
    if ND:
        e(f"    v_and_b32 v12, 1, v{vLANE}")
        e(f"    v_lshlrev_b32 v12, 4, v12")
        e(f"    v_mov_b32 v13, 0xffff")
        e(f"    v_lshlrev_b32 v12, v12, v13")
        e(f"    v_bfe_u32 v13, v{vLANE}, 1, 2")
        for r in range(4):
            e(f"    v_cmp_eq_u32 vcc, {r}, v13")
            e("    s_nop 1")
            e(f"    v_cndmask_b32 v{vSM + r}, 0, v12, vcc")
        e(f"    v_lshlrev_b32 v{vLA}, 2, v{vLANE}")
        e(f"    v_and_b32 v{vLA + 1}, 8, v{vLANE}")
        e(f"    v_lshlrev_b32 v{vLA + 1}, 4, v{vLA + 1}")
        e("    s_mov_b64 s[24:25], s[8:9]")
        e(f"    s_mov_b32 s26, {KV_BYTES:#x}")
        e("    s_mov_b32 s27, 0x20000")
    e("    s_mov_b32 s40, 1")
    e("    s_mov_b32 s41, 1")
    e("    s_mov_b32 s42, 0x000f000f")
    e("    s_mov_b32 s43, 0x000f000f")
    e("    s_movk_i32 s44, 0x3ff")
    e(f"    s_getreg_b32 s{sX}, hwreg(HW_REG_XCC_ID, 0, 4)")
    e("    s_waitcnt lgkmcnt(0)")
    e(f"    s_cmp_gt_i32 s{sCTX}, 0")
    e(f"    s_cselect_b32 s{sC}, {SCALE:#x}, 0")
    e("    s_waitcnt vmcnt(0)")
    stamp(2)
    for r in range(8):
        e(f"    v_and_b32 v{P + r}, s44, v{P + r}")
    e(f"    s_mov_b32 s{sT}, -1")
    e("L_tag:")
    e(f"    s_add_u32 s{sT}, s{sT}, 1")
    for r in range(8):
        e(f"    v_xor_b32 v{vD + r}, s{sT}, v{P + r}")
    e(f"    v_min3_u32 v{u}, v{vD}, v{vD+1}, v{vD+2}")
    e(f"    v_min3_u32 v{u}, v{u}, v{vD+3}, v{vD+4}")
    e(f"    v_min3_u32 v{u}, v{u}, v{vD+5}, v{vD+6}")
    e(f"    v_min_u32 v{u}, v{u}, v{vD+7}")
    e(f"    v_cmp_eq_u32 vcc, 0, v{u}")
    e("    s_cbranch_vccnz L_tag")

    def wait_progress(val, lab):
        e(f"    s_mov_b32 s{sB}, {SPIN:#x}")
        e(f"{lab}:")
        e("    s_sleep 2")
        e(f"    ds_read_b32 v{u}, v{vZ} offset:{LDS_PROG}")
        e(f"    s_sub_u32 s{sB}, s{sB}, 1")
        e("    s_waitcnt lgkmcnt(0)")
        e(f"    v_cmp_gt_i32 vcc, {val}, v{u}")
        e(f"    s_cbranch_scc1 {lab}x")
        e(f"    s_cbranch_vccnz {lab}")
        e(f"{lab}x:")

    wait_progress(1, "L_p1")
    e(f"    s_mov_b32 s{sB}, {SPIN:#x}")
    e("L_w2:")
    e(f"    global_load_dword v{u}, v{vCNT}, s[16:17] sc1")
    e(f"    s_sub_u32 s{sB}, s{sB}, 1")
    e("    s_waitcnt vmcnt(0)")
    e(f"    v_cmp_eq_u32 vcc, 0, v{u}")
    e("    s_cbranch_scc1 L_w2x")
    e("    s_cbranch_vccnz L_w2")
    e("L_w2x:")
    stamp(9)
    e(f"    s_mov_b32 s{sB}, {SPIN:#x}")
    e("L_w1:")
    e("    s_sleep 2")
    for j in range(W // 2):
        e(f"    ds_read_b128 v[{vM + 4 * j}:{vM + 4 * j + 3}], v{vLR} offset:{LDS_REC + 16 * j}")
    e(f"    s_sub_u32 s{sB}, s{sB}, 1")
    e("    s_waitcnt lgkmcnt(0)")
    e(f"    v_max_u32 v{u}, v{vM}, v{vM + 1}")
    for j in range(2, 2 * W, 2):
        e(f"    v_max3_u32 v{u}, v{u}, v{vM + j}, v{vM + j + 1}")
    e(f"    v_cmp_eq_u32 vcc, -1, v{u}")
    e("    s_cbranch_scc1 L_w1x")
    e("    s_cbranch_vccnz L_w1")
    e("L_w1x:")
    stamp(3)
    for j in range(W * ND):
        e(f"    ds_read2st64_b32 v[{vSP + 2 * j}:{vSP + 2 * j + 1}], v{vLA} offset0:{LDS_P // 256 + 2 * j} offset1:{LDS_P // 256 + 2 * j + 1}")
    e(f"    v_max_f32 v{u+1}, v{vM}, v{vM + 1}")
    for j in range(2, W, 2):
        e(f"    v_max3_f32 v{u+1}, v{u+1}, v{vM + j}, v{vM + j + 1}")
    for w in range(W):
        e(f"    v_sub_f32 v{vF + w}, v{vM + w}, v{u+1}")
    for w in range(W):
        e(f"    v_mul_f32 v{vF + w}, s{sC}, v{vF + w}")
    for w in range(W):
        e(f"    v_exp_f32 v{vF + w}, v{vF + w}")
    e(f"    s_lshl_b32 s{sD}, s{sX}, 12")
    e(f"    s_or_b32 s{sD}, s{sD}, s{sT}")
    e(f"    v_or_b32 v{u+1}, s{sD}, v{u+1}")
    e(f"    v_mul_f32 v{u+2}, v{vF}, v{vM + W}")
    for w in range(1, W):
        e(f"    v_fmac_f32 v{u+2}, v{vF + w}, v{vM + W + w}")
    e("    s_mov_b64 exec, s[40:41]")
    e(f"    global_store_dwordx2 v{vRECP}, v[{u+1}:{u+2}], s[18:19] sc1")
    e("    s_mov_b64 exec, -1")
    stamp(4)
    wait_progress(2, "L_p2")
    stamp(10)
    if o.owarm == 2:
        e(f"    global_load_ushort v14, v{vOUT}, s[14:15]")
    e(f"    global_load_dwordx2 v[{u+1}:{u+2}], v{vRECG}, s[18:19] sc1")
    if ND:
        wait_progress(3, "L_p3")
        for j in range(W * ND):
            for hf in range(2):
                b = vSV + 8 * j + 4 * hf
                e(f"    buffer_load_dwordx4 v[{b}:{b+3}], v{vSP + 2 * j + 1}, s[24:27], 0 offen offset:{256 * hf}{fl}")
    e(f"    s_mov_b32 s{sB}, {SPIN:#x}")
    e(f"    s_waitcnt vmcnt({2 * W * ND})")
    e("L_w3:")
    e(f"    v_max_u32 v{u}, v{u+1}, v{u+2}")
    e(f"    v_cmp_eq_u32 vcc, -1, v{u}")
    e("    s_cbranch_vccz L_w3x")
    e(f"    global_load_dwordx2 v[{u+1}:{u+2}], v{vRECG}, s[18:19] sc1")
    e(f"    s_sub_u32 s{sB}, s{sB}, 1")
    e("    s_waitcnt vmcnt(0)")
    e("    s_cbranch_scc0 L_w3")
    e("L_w3x:")
    stamp(5)

    def half_red(op, a, b):
        for ror in (1, 2, 4, 8):
            e("    s_nop 1")
            e(f"    {op}_dpp v{a}, v{a}, v{a} row_ror:{ror}{DPP}")
        e(f"    v_mov_b32 v{b}, v{a}")
        e("    s_nop 1")
        e(f"    v_permlane16_swap_b32 v{b}, v{a}")
        e(f"    {op} v{a}, v{a}, v{b}")

    e(f"    ds_bpermute_b32 v{vT0}, v{vT0}, v{u+1}")
    e(f"    ds_bpermute_b32 v{vT1}, v{vT1}, v{u+1}")
    e(f"    v_bfe_u32 v{u}, v{u+1}, 12, 4")
    e(f"    v_cmp_ne_u32 s[46:47], s{sX}, v{u}")
    e(f"    v_and_b32 v{u+5}, 0xffff0000, v{u+1}")
    e(f"    v_mov_b32 v{u+3}, v{u+5}")
    half_red("v_max_f32", u + 3, u + 4)
    e(f"    v_sub_f32 v{u+5}, v{u+5}, v{u+3}")
    e(f"    v_mul_f32 v{u+5}, s{sC}, v{u+5}")
    e(f"    v_exp_f32 v{u+5}, v{u+5}")
    for w in range(W):
        e(f"    v_sub_f32 v{vF + w}, v{vM + w}, v{u+3}")
    for w in range(W):
        e(f"    v_mul_f32 v{vF + w}, s{sC}, v{vF + w}")
    e(f"    v_mul_f32 v{u+2}, v{u+5}, v{u+2}")
    half_red("v_add_f32", u + 2, u + 4)
    e(f"    v_rcp_f32 v{u+2}, v{u+2}")
    for w in range(W):
        e(f"    v_exp_f32 v{vF + w}, v{vF + w}")
    e("    s_nop 0")
    for w in range(W):
        e(f"    v_mul_f32 v{vF + w}, v{vF + w}, v{u+2}")
    if ND:
        for w in range(W):
            e(f"    ds_bpermute_b32 v{vM + w}, v{vLA + 1}, v{vF + w}")
        e("    s_waitcnt lgkmcnt(0)")
        for j in range(W * ND):
            e(f"    v_mul_f32 v{vSP + 2 * j}, v{vSP + 2 * j}, v{vM + j // ND}")
        for j in range(W * ND):
            e(f"    v_cvt_pk_bf16_f32 v{vSP + 2 * j}, v{vSP + 2 * j}, v{vSP + 2 * j}")
        for j in range(W * ND):
            for r in range(4):
                e(f"    v_and_b32 v{vSA + 4 * j + r}, v{vSP + 2 * j}, v{vSM + r}")
    stamp(6)
    e("    s_waitcnt lgkmcnt(0)")
    e(f"    s_mov_b32 s{sB}, {0 if o.nopoll else SPIN:#x}")
    if o.prio:
        e(f"    s_setprio {o.prio}")
    if o.local:
        e("    s_cmp_eq_u64 s[46:47], 0")

    def publish(hf):
        d0 = vD + 4 * hf * W
        for r in range(4):
            e(f"    v_bfi_b32 v{d0 + r}, s44, v{vT0 + hf}, v{d0 + r}")
        if o.local:
            e(f"    s_cbranch_scc1 L_loc{hf}")
            e(f"    global_store_dwordx4 v{vPUB0 + hf}, v[{d0}:{d0+3}], s[18:19] sc1")
            e(f"    s_branch L_pub{hf}")
            e(f"L_loc{hf}:")
            e(f"    global_store_dwordx4 v{vPUB0 + hf}, v[{d0}:{d0+3}], s[18:19]")
            e(f"L_pub{hf}:")
        else:
            e(f"    global_store_dwordx4 v{vPUB0 + hf}, v[{d0}:{d0+3}], s[18:19] sc1")

    e("    s_barrier")
    if ts == "cyc" and o.cycs == 0:
        stamp(1)
        e("    s_waitcnt lgkmcnt(0)")
    for hf in range(2):
        for w in range(W):
            d = vD + 4 * (hf * W + w)
            e(f"    ds_read_b128 v[{d}:{d+3}], v{vLO} offset:{LDS_O + 2048 * w + 1024 * hf}")
    if ts == "cyc" and o.cycs == 3:
        e("    s_waitcnt lgkmcnt(0)")
        stamp(1)
    for hf in range(2):
        d0 = vD + 4 * hf * W
        for w in range(W):
            if not (ts == "cyc" and (o.cycs == 3 or (o.cycs in (4, 5) and hf == 1))):
                e(f"    s_waitcnt lgkmcnt({min(15, 2 * W - 1 - (hf * W + w))})")
            d = d0 + 4 * w
            f2 = vF + (w & ~1)
            sel = w & 1
            for r in (0, 2):
                if w == 0:
                    e(f"    v_pk_mul_f32 v[{d0+r}:{d0+r+1}], v[{f2}:{f2+1}], v[{d+r}:{d+r+1}] op_sel:[{sel},0] op_sel_hi:[{sel},1]")
                else:
                    e(f"    v_pk_fma_f32 v[{d0+r}:{d0+r+1}], v[{f2}:{f2+1}], v[{d+r}:{d+r+1}], v[{d0+r}:{d0+r+1}] op_sel:[{sel},0,0] op_sel_hi:[{sel},1,1]")
        if ts == "cyc" and o.cycs == 1 and hf == 1:
            stamp(1)
        if ts == "cyc" and o.cycs == 4 and hf == 0:
            e("    s_waitcnt lgkmcnt(0)")
            stamp(1)
        if not ND:
            publish(hf)
        if ts == "cyc" and o.cycs == 5 and hf == 0:
            e("    s_waitcnt lgkmcnt(0)")
            stamp(1)
    if ND:
        stamp(11)
        for j in range(W * ND):
            for hf in range(2):
                d0 = vD + 4 * hf * W
                b = vSV + 8 * j + 4 * hf
                e(f"    s_waitcnt vmcnt({2 * W * ND - 1 - 2 * j - hf})")
                e(f"    v_mfma_f32_16x16x32_bf16 v[{d0}:{d0+3}], v[{vSA + 4 * j}:{vSA + 4 * j + 3}], v[{b}:{b+3}], v[{d0}:{d0+3}]")
        e("    s_nop 5")
        publish(0)
        publish(1)
    stamp(7)

    def poll_issue(k):
        b = vPL + 8 * k
        e(f"    global_load_dwordx4 v[{b}:{b+3}], v{vMB}, s[18:19] sc1")
        e(f"    global_load_dwordx4 v[{b+4}:{b+7}], v{vMB}, s[18:19] offset:1024 sc1")

    for k in range(o.pd - 1):
        poll_issue(k)
    e("L_poll:")
    for k in range(o.pd):
        b = vPL + 8 * k
        poll_issue((k + o.pd - 1) % o.pd)
        e(f"    s_waitcnt vmcnt({2 * o.pd - 1})")
        for r in range(4):
            e(f"    v_xor_b32 v{P + r}, s{sT}, v{b + r}")
        e(f"    v_or3_b32 v1, v{P}, v{P+1}, v{P+2}")
        e(f"    s_waitcnt vmcnt({2 * o.pd - 2})")
        for r in range(4, 8):
            e(f"    v_xor_b32 v{P + r}, s{sT}, v{b + r}")
        e(f"    v_or3_b32 v2, v{P+3}, v{P+4}, v{P+5}")
        e(f"    v_or3_b32 v1, v1, v{P+6}, v{P+7}")
        e("    v_bitop3_b32 v1, v1, v2, s44 bitop3:0xa8")
        e("    v_cmp_ne_u32 vcc, 0, v1")
        e(f"    v_pk_add_f32 v[{P}:{P+1}], v[{P}:{P+1}], v[{P+4}:{P+5}]")
        e(f"    v_pk_add_f32 v[{P+2}:{P+3}], v[{P+2}:{P+3}], v[{P+6}:{P+7}]")
        e("    s_cbranch_vccz L_pollx")
    e(f"    s_sub_u32 s{sB}, s{sB}, 1")
    e("    s_cbranch_scc0 L_poll")
    e("L_pollx:")
    stamp(8)
    e(f"    v_permlane32_swap_b32 v{P}, v{P+1}")
    e(f"    v_permlane32_swap_b32 v{P+2}, v{P+3}")
    e(f"    v_add_f32 v{P}, v{P}, v{P+1}")
    e(f"    v_add_f32 v{P+2}, v{P+2}, v{P+3}")
    e("    s_nop 1")
    e(f"    v_permlane16_swap_b32 v{P}, v{P+2}")
    e(f"    v_add_f32 v{P}, v{P}, v{P+2}")
    e("    s_nop 1")
    e(f"    v_add_f32_dpp v{P}, v{P}, v{P} row_ror:4{DPP}")
    e("    s_nop 1")
    e(f"    v_add_f32_dpp v{P}, v{P}, v{P} row_ror:8{DPP}")
    e(f"    v_cvt_pk_bf16_f32 v{P}, v{P}, v{P}")
    e("    s_mov_b64 exec, s[42:43]")
    e(f"    global_store_short v{vOUT}, v{P}, s[14:15]{' ' + o.outflags if o.outflags else ''}")
    e("L_fin:")
    if ts:
        e("    s_mov_b64 exec, -1")
        e("    s_waitcnt vmcnt(0)")
        stamp(12)
        e("    s_barrier")
        e("    s_getreg_b32 s96, hwreg(HW_REG_XCC_ID)")
        e("    s_getreg_b32 s97, hwreg(HW_REG_HW_ID)")
        e("    s_waitcnt lgkmcnt(0)")
        e(f"    s_lshl_b32 s{sA}, s2, 4")
        e(f"    s_add_u32 s{sA}, s{sA}, s{sW}")
        e(f"    s_lshl_b32 s{sA}, s{sA}, 6")
        e(f"    s_add_u32 s{sA}, s{sA}, {TS_OFF:#x}")
        e(f"    v_mov_b32 v1, s{sA}")
        for k in range(13):
            e(f"    v_mov_b32 v{16 + k}, s{70 + 2 * k}")
        e("    v_mov_b32 v29, s96")
        e("    v_mov_b32 v30, s97")
        e(f"    v_mov_b32 v31, s{sB}")
        e("    s_mov_b64 exec, 1")
        for k in range(4):
            e(f"    global_store_dwordx4 v1, v[{16 + 4 * k}:{16 + 4 * k + 3}], s[18:19] offset:{16 * k}")
        if ts.startswith("enc"):
            k, mul, add, wv, xc = [int(x) for x in ts.split(":")[1:]]
            e(f"    s_cmp_lg_u32 s{sW}, {wv}")
            e("    s_cbranch_scc1 L_done")
            if xc >= 0:
                e("    s_and_b32 s96, s96, 15")
                e(f"    s_cmp_lg_u32 s96, {xc}")
                e("    s_cbranch_scc1 L_done")
            e(f"    s_sub_u32 s{sA}, s{70 + 2 * k}, s70")
            e(f"    s_mul_i32 s{sA}, s{sA}, {mul}")
            e(f"    s_add_u32 s{sA}, s{sA}, {add}")
            e(f"    s_min_u32 s{sA}, s{sA}, 100000")
            e("L_enc:")
            e("    s_memrealtime s[98:99]")
            e("    s_waitcnt lgkmcnt(0)")
            e(f"    s_sub_u32 s{sB}, s98, s70")
            e(f"    s_cmp_lt_u32 s{sB}, s{sA}")
            e("    s_cbranch_scc1 L_enc")
    e("L_done:")
    e("    s_endpgm")

    e('.section .rodata,"a"')
    e(".p2align 6")
    e(f".amdhsa_kernel {kn}")
    e(f"  .amdhsa_next_free_vgpr {nfv}")
    e("  .amdhsa_next_free_sgpr 102")
    e(f"  .amdhsa_accum_offset {accum}")
    e("  .amdhsa_group_segment_fixed_size 0")
    e("  .amdhsa_kernarg_size 64")
    e("  .amdhsa_user_sgpr_count 2")
    e("  .amdhsa_user_sgpr_kernarg_segment_ptr 1")
    e("  .amdhsa_system_sgpr_workgroup_id_x 1")
    e("  .amdhsa_float_denorm_mode_32 3")
    e(".end_amdhsa_kernel")
    return HEADER + "\n".join(L) + "\n"


if __name__ == "__main__":
    ap = argparse.ArgumentParser()
    ap.add_argument("out")
    ap.add_argument("opts", nargs="*")
    a = ap.parse_args()
    o = Opt()
    for kv in a.opts:
        k, v = kv.split("=", 1)
        cur = getattr(Opt, k)
        setattr(o, k, type(cur)(v.replace("+", " ")) if isinstance(cur, str) else int(v, 0))
    open(a.out, "w").write(gen(o))
```
